```python
import torch

def _softmax(x, axis=-1):
    return torch.softmax(x, dim=axis)
def _gelu(x):
    return torch.nn.functional.gelu(x, approximate="tanh")
def _silu(x):
    return torch.nn.functional.silu(x)
def _sigmoid(x):
    return torch.sigmoid(x)
def _layernorm(x, axis=-1, eps=1e-5):
    m = x.mean(dim=axis, keepdim=True)
    v = x.var(dim=axis, keepdim=True, unbiased=False)
    return (x - m) / torch.sqrt(v + eps)
def _scatter_add(tgt, idx, src, axis=0):
    return tgt.clone().index_add_(axis, idx, src)
def _segment_sum(src, seg, n):
    out = torch.zeros((n,) + src.shape[1:], dtype=src.dtype)
    return out.index_add_(0, seg, src)
def _pad(x, pw):
    flat = tuple(v for pair in reversed(pw) for v in pair)
    return torch.nn.functional.pad(x, flat)

kernel_name = 'parallel_sum__sliding_local_dilated__glu_gated_geglu__prompt'

def setup_inputs():

    _w = (lambda a: (lambda t: t.to(torch.bfloat16) if t.is_floating_point() else t)(torch.as_tensor(a)))
    def _A_setup():
        B, S, D = 1, 2048, 640
        return {
            "x": _w((lambda *s: torch.randn(*s, dtype=torch.bfloat16) * 0.05)(B, S, D)),
            "wqkv": _w((lambda *s: torch.randn(*s, dtype=torch.bfloat16) * 0.05)(D, 3 * D)),
            "wo": _w((lambda *s: torch.randn(*s, dtype=torch.bfloat16) * 0.05)(D, D)),
        }
    _A_in = _A_setup()

    def _B_setup():
        B, S, Dm, Df = 1, 2048, 640, 1728
        return {
            "x": _w((lambda *s: torch.randn(*s, dtype=torch.bfloat16) * 0.05)(B, S, Dm)),
            "w_gate": _w((lambda *s: torch.randn(*s, dtype=torch.bfloat16) * 0.8)(Dm, Df) * (Dm ** -0.5)),
            "w_up": _w((lambda *s: torch.randn(*s, dtype=torch.bfloat16) * 0.8)(Dm, Df) * (Dm ** -0.5)),
            "w_down": _w((lambda *s: torch.randn(*s, dtype=torch.bfloat16) * 0.8)(Df, Dm) * (Df ** -0.5)),
        }
    _B_in = _B_setup()

    return {
        "A_x": _A_in["x"],
        "A_wqkv": _A_in["wqkv"],
        "A_wo": _A_in["wo"],
        "B_x": _B_in["x"],
        "B_w_gate": _B_in["w_gate"],
        "B_w_up": _B_in["w_up"],
        "B_w_down": _B_in["w_down"],
    }

def reference(A_x, A_wqkv, A_wo, B_x, B_w_gate, B_w_up, B_w_down):
    def _A_ref(x, wqkv, wo):
        B, S, D = x.shape
        H = 32; Dh = D // H
        W, dil = 8, 2
        qkv = (lambda x, *d: x.permute(*d))((x @ wqkv).reshape(B, S, 3, H, Dh), 2, 0, 3, 1, 4)
        q, k, v = qkv[0], qkv[1], qkv[2]
        scale = Dh ** -0.5
        pos = torch.arange(S)
        off = torch.arange(W) * dil
        idx = pos[:, None] - off[None, :]
        mask = idx >= 0
        idx_c = torch.where(mask, idx, 0).reshape(-1)
        kg = k[:, :, idx_c, :].reshape(B, H, S, W, Dh)
        vg = v[:, :, idx_c, :].reshape(B, H, S, W, Dh)
        logits = torch.einsum("bhsd,bhswd->bhsw", q, kg) * scale
        logits = torch.where(mask[None, None, :, :], logits, -1e9)
        attn = _softmax(logits, axis=-1)
        o = torch.einsum("bhsw,bhswd->bhsd", attn, vg)
        return (lambda x, *d: x.permute(*d))(o, 0, 2, 1, 3).reshape(B, S, D) @ wo

    def _B_ref(x, w_gate, w_up, w_down):
        g = torch.einsum("bsd,df->bsf", x, w_gate)
        u = torch.einsum("bsd,df->bsf", x, w_up)
        h = _gelu(g) * u
        return torch.einsum("bsf,fd->bsd", h, w_down)

    x = A_x
    xn = _layernorm(x, axis=-1)
    return x + _A_ref(xn, A_wqkv, A_wo) + _B_ref(xn, B_w_gate, B_w_up, B_w_down)
```

```python
import sys, struct

NAME = "parallel_sum__sliding_local_dilated__glu_gated_geglu__prompt"
OPT = dict(stats=1, k2_P=4)
for a in sys.argv[2:]:
    k, v = a.split("=")
    OPT[k] = int(v)

L = []
def e(s): L.append("    " + s)
def lab(s): L.append(s + ":")
def cm(s): L.append("    ; " + s)
def f32(x): return "0x%08x" % struct.unpack("<I", struct.pack("<f", x))[0]
def vr(a, n): return "v[%d:%d]" % (a, a + n - 1)
def sr(a, n): return "s[%d:%d]" % (a, a + n - 1)

A2_BYTES = 32 * 74 * 4096
W2_OFF = 0xA00000
W2_BYTES = 8 * 74 * 5120
WS_USED = W2_OFF + W2_BYTES

XSLOT = 32768
WBASE = 3 * XSLOT
WREGB = 6176
WSLOT = 12352
EX = 102400
EXC = EX + 2048
QP = 392
K1_LDS = 163840

def srd(d, b, nbytes):
    e(f"s_mov_b32 s{d}, s{b}")
    e(f"s_and_b32 s{d+1}, s{b+1}, 0xffff")
    e(f"s_mov_b32 s{d+2}, {nbytes}")
    e(f"s_mov_b32 s{d+3}, 0x00020000")

def k1():
    sX, sWA, sWB, sWS = 8, 12, 16, 20
    sW, sWM, sWN, sROT = 40, 41, 42, 43
    sTYPE, sC, sR0, sPITCH = 44, 45, 46, 47
    sJ, sOB, sCOLB = 48, 49, 50
    sI = 51
    sXSO, sWSO, sWSTEP = 52, 53, 54
    sXD, sWD = 55, 56
    sXR, sWR = 57, 58
    sT0, sT1, sT2, sT3 = 60, 61, 62, 63
    sEXM = 64
    sONE = 66
    sFULL = 68
    sST = 70
    sMT = 73
    vL, vM, vH = 1, 2, 3
    vXV = 4
    vWVA, vWVB = 8, 9
    vXB, vWA0, vWA1 = 10, 11, 12
    vTA = 13
    vXB0, vWB0, vWB1 = 21, 22, 23
    vS1, vS2 = 14, 16
    vCS = 18
    vT = 24
    FA, FB = 88, 108
    ACC = 128

    lab(f"k1_kernel")
    e("s_cmp_ge_u32 s2, 256")
    e("s_cbranch_scc1 K1_END")
    e("s_load_dwordx4 s[24:27], s[0:1], 0")
    e("s_load_dwordx2 s[28:29], s[0:1], 16")
    e("s_load_dwordx4 s[32:35], s[0:1], 32")
    e("s_load_dwordx2 s[36:37], s[0:1], 48")
    e("s_load_dwordx2 s[38:39], s[0:1], 72")
    e(f"v_lshrrev_b32 v{vT}, 6, v0")
    e(f"v_and_b32 v{vL}, 63, v0")
    e(f"v_readfirstlane_b32 s{sW}, v{vT}")
    e(f"v_and_b32 v{vM}, 31, v0")
    e(f"v_bfe_u32 v{vH}, v0, 5, 1")
    cm("role decode")
    e(f"s_and_b32 s{sT0}, s2, 7")
    e(f"s_lshr_b32 s{sT1}, s2, 3")
    e(f"s_and_b32 s{sT2}, s{sT0}, 1")
    e(f"s_lshr_b32 s{sT3}, s{sT0}, 1")
    e(f"s_lshr_b32 s{sWM}, s{sW}, 1")
    e(f"s_and_b32 s{sWN}, s{sW}, 1")
    e(f"s_and_b32 s{sROT}, s{sWM}, 1")
    e(f"s_cmp_lt_u32 s{sT1}, 18")
    e("s_cbranch_scc0 K1_NOTFF")
    cm("ff")
    e(f"s_mul_i32 s{sT0}, s{sT3}, 18")
    e(f"s_add_u32 s{sT0}, s{sT0}, s{sT1}")
    e(f"s_lshr_b32 s{sC}, s{sT0}, 2")
    e(f"s_and_b32 s{sT0}, s{sT0}, 3")
    e(f"s_lshl_b32 s{sT2}, s{sT2}, 2")
    e(f"s_add_u32 s{sT0}, s{sT0}, s{sT2}")
    e(f"s_lshl_b32 s{sR0}, s{sT0}, 8")
    e(f"s_mov_b32 s{sTYPE}, 0")
    e(f"s_movk_i32 s{sPITCH}, 3456")
    e(f"s_mov_b32 s{sJ}, 0")
    e(f"s_mov_b32 s{sOB}, 0")
    e(f"s_mul_i32 s{sCOLB}, s{sC}, 192")
    e("s_waitcnt lgkmcnt(0)")
    srd(sWA, 32, 640 * 1728 * 2)
    srd(sWB, 34, 640 * 1728 * 2)
    e("s_branch K1_COMMON")
    lab("K1_NOTFF")
    e(f"s_mul_i32 s{sT0}, s{sT3}, 14")
    e(f"s_add_u32 s{sT0}, s{sT0}, s{sT1}")
    e(f"s_sub_u32 s{sT0}, s{sT0}, 18")
    e(f"s_cmp_eq_u32 s{sT2}, 0")
    e("s_cbranch_scc0 K1_MH1")
    e(f"s_mov_b32 s{sT1}, 0")
    e(f"s_cmp_lt_u32 s{sT0}, 55")
    e("s_cbranch_scc0 K1_SPARE")
    e(f"s_mul_i32 s{sC}, s{sT0}, 205")
    e(f"s_lshr_b32 s{sC}, s{sC}, 10")
    e(f"s_mul_i32 s{sT1}, s{sC}, 5")
    e(f"s_sub_u32 s{sT1}, s{sT0}, s{sT1}")
    e("s_branch K1_ATT")
    lab("K1_MH1")
    e(f"s_sub_u32 s{sT1}, s{sT0}, 43")
    e(f"s_cmp_lt_u32 s{sT0}, 44")
    e("s_cbranch_scc0 K1_SPARE")
    e(f"s_lshr_b32 s{sC}, s{sT0}, 2")
    e(f"s_and_b32 s{sT1}, s{sT0}, 3")
    e(f"s_add_u32 s{sT1}, s{sT1}, 5")
    lab("K1_ATT")
    e(f"s_mul_i32 s{sR0}, s{sT1}, 240")
    e(f"s_sub_u32 s{sR0}, s{sR0}, 16")
    e(f"s_mov_b32 s{sTYPE}, 1")
    e(f"s_movk_i32 s{sPITCH}, 3840")
    e(f"s_movk_i32 s{sJ}, 1152")
    e(f"s_movk_i32 s{sOB}, 1344")
    e(f"s_mul_i32 s{sCOLB}, s{sC}, 120")
    e("s_waitcnt lgkmcnt(0)")
    srd(sWA, 26, 640 * 1920 * 2)
    srd(sWB, 26, 640 * 1920 * 2)
    lab("K1_COMMON")
    srd(sX, 24, 2048 * 1280)
    srd(sWS, 38, WS_USED)
    cm("x dma voffsets")
    t0, t1, t2, t3, t4 = vT, vT + 1, vT + 2, vT + 3, vT + 4
    e(f"v_lshrrev_b32 v{t0}, 3, v{vL}")
    e(f"v_and_b32 v{t1}, 7, v{vL}")
    e(f"s_lshl_b32 s{sT0}, s{sW}, 5")
    e(f"s_add_i32 s{sT0}, s{sT0}, s{sR0}")
    e(f"s_movk_i32 s{sT1}, 1280")
    for i in range(4):
        e(f"v_add_u32 v{t2}, {8*i}, v{t0}")
        e(f"v_bfe_u32 v{t3}, v{t2}, 1, 3")
        e(f"v_xor_b32 v{t3}, v{t3}, v{t1}")
        e(f"v_add_u32 v{t2}, s{sT0}, v{t2}")
        e(f"v_max_i32 v{t2}, 0, v{t2}")
        e(f"v_min_i32 v{t2}, 0x7ff, v{t2}")
        e(f"v_mul_lo_u32 v{t2}, v{t2}, s{sT1}")
        e(f"v_lshl_add_u32 v{vXV+i}, v{t3}, 4, v{t2}")
    cm("W dma voffsets")
    e(f"v_mul_u32_u24 v{t0}, 43, v{vL}")
    e(f"v_lshrrev_b32 v{t0}, 9, v{t0}")
    e(f"v_mul_u32_u24 v{t1}, 12, v{t0}")
    e(f"v_sub_u32 v{t1}, v{vL}, v{t1}")
    e(f"s_lshl_b32 s{sT0}, s{sW}, 2")
    e(f"v_add_u32 v{t0}, s{sT0}, v{t0}")
    e(f"v_mul_lo_u32 v{t0}, v{t0}, s{sPITCH}")
    e(f"v_add_u32 v{t0}, s{sCOLB}, v{t0}")
    e(f"v_lshl_add_u32 v{t0}, v{t1}, 4, v{t0}")
    e(f"v_mov_b32 v{t2}, s{sJ}")
    e(f"v_cmp_le_u32 vcc, 8, v{t1}")
    e("s_nop 1")
    e(f"v_cndmask_b32 v{t3}, 0, v{t2}, vcc")
    e(f"v_add_u32 v{vWVA}, v{t0}, v{t3}")
    e(f"v_cmp_le_u32 vcc, 4, v{t1}")
    e(f"v_add_u32 v{t0}, s{sOB}, v{t0}")
    e("s_nop 0")
    e(f"v_cndmask_b32 v{t3}, 0, v{t2}, vcc")
    e(f"v_add_u32 v{vWVB}, v{t0}, v{t3}")
    e(f"s_mov_b32 s{sEXM}, -1")
    e(f"s_mov_b32 s{sEXM+1}, 0xffff")
    e(f"s_mov_b64 s[{sFULL}:{sFULL+1}], exec")
    e(f"s_lshl_b32 s{sWSTEP}, s{sPITCH}, 5")
    e(f"s_mov_b32 s{sXSO}, 0")
    e(f"s_mov_b32 s{sWSO}, 0")
    e(f"s_lshl_b32 s{sXD}, s{sW}, 12")
    e(f"s_mul_i32 s{sWD}, s{sW}, 768")
    e(f"s_add_u32 s{sWD}, s{sWD}, {WBASE}")

    def dma_w():
        e(f"s_mov_b32 m0, s{sWD}")
        e(f"s_mov_b64 exec, s[{sEXM}:{sEXM+1}]")
        e(f"buffer_load_dwordx4 v{vWVA}, {sr(sWA,4)}, s{sWSO} offen lds")
        e(f"s_add_u32 m0, s{sWD}, {WREGB}")
        e(f"s_add_u32 s{sWD}, s{sWD}, {WSLOT}")
        e(f"buffer_load_dwordx4 v{vWVB}, {sr(sWB,4)}, s{sWSO} offen lds")
        e(f"s_mov_b64 exec, s[{sFULL}:{sFULL+1}]")
        e(f"s_add_u32 s{sWSO}, s{sWSO}, s{sWSTEP}")
        e(f"s_cmp_ge_u32 s{sWD}, {WBASE + 5*WSLOT}")
        e(f"s_cselect_b32 s{sT0}, {5*WSLOT}, 0")
        e(f"s_sub_u32 s{sWD}, s{sWD}, s{sT0}")
    def dma_x():
        for i in range(4):
            if i == 0:
                e(f"s_mov_b32 m0, s{sXD}")
            else:
                e(f"s_add_u32 m0, s{sXD}, {1024*i}")
            e("s_nop 0")
            e(f"buffer_load_dwordx4 v{vXV+i}, {sr(sX,4)}, s{sXSO} offen lds")
        e(f"s_add_u32 s{sXD}, s{sXD}, {XSLOT}")
        e(f"s_add_u32 s{sXSO}, s{sXSO}, 128")
        e(f"s_cmp_ge_u32 s{sXD}, {3*XSLOT}")
        e(f"s_cselect_b32 s{sT0}, {3*XSLOT}, 0")
        e(f"s_sub_u32 s{sXD}, s{sXD}, s{sT0}")

    cm("prologue DMA groups")
    dma_x(); dma_w(); dma_w(); dma_x(); dma_w(); dma_w()
    cm("LDS read addresses")
    e(f"v_bfe_u32 v{t0}, v{vM}, 1, 3")
    e(f"v_xor_b32 v{t0}, v{t0}, v{vH}")
    e(f"s_lshl_b32 s{sT0}, s{sROT}, 1")
    e(f"v_xor_b32 v{t0}, s{sT0}, v{t0}")
    e(f"v_lshlrev_b32 v{t0}, 4, v{t0}")
    e(f"v_lshl_add_u32 v{t0}, v{vM}, 7, v{t0}")
    e(f"s_lshl_b32 s{sT0}, s{sW}, 12")
    e(f"v_add_u32 v{vXB0}, s{sT0}, v{t0}")
    e(f"v_add_u32 v{vXB}, s{sT0}, v{t0}")
    e(f"v_bfe_u32 v{t0}, v{vL}, 4, 1")
    e(f"v_mul_u32_u24 v{t0}, {WREGB}, v{t0}")
    e(f"v_bfe_u32 v{t1}, v{vL}, 2, 2")
    e(f"v_lshl_add_u32 v{t1}, v{vH}, 3, v{t1}")
    e(f"v_mul_u32_u24 v{t1}, 192, v{t1}")
    e(f"v_add_u32 v{t0}, v{t0}, v{t1}")
    e(f"v_and_b32 v{t1}, 1, v{vL}")
    e(f"v_lshl_add_u32 v{t0}, v{t1}, 4, v{t0}")
    e(f"v_bfe_u32 v{t1}, v{vL}, 1, 1")
    e(f"v_lshl_add_u32 v{t0}, v{t1}, 3, v{t0}")
    e(f"s_mul_i32 s{sT0}, s{sWN}, 96")
    e(f"s_add_u32 s{sT0}, s{sT0}, {WBASE}")
    e(f"s_mul_i32 s{sT1}, s{sROT}, 3072")
    e(f"s_add_u32 s{sT2}, s{sT0}, s{sT1}")
    e(f"v_add_u32 v{vWB0}, s{sT2}, v{t0}")
    e(f"v_add_u32 v{vWA0}, s{sT2}, v{t0}")
    e(f"s_sub_u32 s{sT2}, s{sT0}, s{sT1}")
    e(f"s_add_u32 s{sT2}, s{sT2}, 3072")
    e(f"v_add_u32 v{vWB1}, s{sT2}, v{t0}")
    e(f"s_mov_b32 s{sXR}, 0")
    e(f"s_mov_b32 s{sWR}, 0")
    e(f"s_mov_b32 s{sONE}, 0x3f803f80")
    for r in range(vS1, vCS + 3):
        e(f"v_mov_b32 v{r}, 0")
    for r in range(ACC, ACC + 96):
        e(f"v_mov_b32 v{r}, 0")

    def reads(F, wa, sp):
        for mbi in range(2):
            cst = 32 * sp + 4096 * mbi
            if cst == 0:
                e(f"ds_read_b128 {vr(F+4*mbi,4)}, v{vXB}")
            else:
                e(f"v_xor_b32 v{vTA}, {cst}, v{vXB}")
                e(f"ds_read_b128 {vr(F+4*mbi,4)}, v{vTA}")
        for t in range(3):
            e(f"ds_read_b64_tr_b16 {vr(F+8+4*t,2)}, v{wa} offset:{32*t}")
            e(f"ds_read_b64_tr_b16 {vr(F+8+4*t+2,2)}, v{wa} offset:{32*t+768}")
    def adv_w():
        e(f"v_add_u32 v{vWA1}, s{sWR}, v{vWB1}")
        e(f"s_add_u32 s{sWR}, s{sWR}, {WSLOT}")
        e(f"s_cmp_ge_u32 s{sWR}, {5*WSLOT}")
        e(f"s_cselect_b32 s{sWR}, 0, s{sWR}")
        e(f"v_add_u32 v{vWA0}, s{sWR}, v{vWB0}")
    def adv_x():
        e(f"s_add_u32 s{sXR}, s{sXR}, {XSLOT}")
        e(f"s_cmp_ge_u32 s{sXR}, {3*XSLOT}")
        e(f"s_cselect_b32 s{sXR}, 0, s{sXR}")
        e(f"v_add_u32 v{vXB}, s{sXR}, v{vXB0}")
    def mfmas(F, cs):
        st = []
        if OPT["stats"]:
            for j in range(4):
                st.append(f"v_dot2c_f32_bf16 v{vS1+(j&1)}, s{sONE}, v{F+j}")
                st.append(f"v_dot2c_f32_bf16 v{vS2+(j&1)}, v{F+j}, v{F+j}")
            if cs:
                for j in range(4):
                    for t in range(3):
                        st.append(f"v_dot2c_f32_bf16 v{vCS+t}, s{sONE}, v{F+8+4*t+j}")
        n = len(st); k = 0
        idx = 0
        for t in range(3):
            for mbi in range(2):
                a = ACC + (mbi * 3 + t) * 16
                e(f"v_mfma_f32_32x32x16_bf16 {vr(a,16)}, {vr(F+8+4*t,4)}, {vr(F+4*mbi,4)}, {vr(a,16)}")
                idx += 1
                while k < n * idx // 6:
                    e(st[k]); k += 1

    e("s_waitcnt vmcnt(10)")
    e("s_barrier")
    reads(FA, vWA0, 0)
    e(f"s_mov_b32 s{sI}, 0")
    L.append(".p2align 6")
    lab("K1_LOOP")
    cm("---- even step")
    adv_w()
    e("s_waitcnt vmcnt(8)")
    e("s_barrier")
    e(f"s_cmp_lt_u32 s{sI}, 8")
    e("s_cbranch_scc0 K1_NODMA_E")
    dma_x(); dma_w()
    lab("K1_NODMA_E")
    reads(FB, vWA1, 1)
    e("s_waitcnt lgkmcnt(8)")
    mfmas(FA, True)
    reads(FA, vWA0, 2)
    e("s_waitcnt lgkmcnt(8)")
    mfmas(FB, False)
    cm("---- odd step")
    adv_w()
    e(f"s_cmp_lt_u32 s{sI}, 8")
    e("s_cbranch_scc1 K1_W8")
    e("s_waitcnt vmcnt(0)")
    lab("K1_W8")
    e("s_waitcnt vmcnt(8)")
    e("s_barrier")
    e("s_cbranch_scc0 K1_NODMA_O")
    dma_w()
    lab("K1_NODMA_O")
    reads(FB, vWA1, 3)
    adv_x()
    e("s_waitcnt lgkmcnt(8)")
    mfmas(FA, True)
    reads(FA, vWA0, 0)
    e("s_waitcnt lgkmcnt(8)")
    mfmas(FB, False)
    e(f"s_add_u32 s{sI}, s{sI}, 1")
    e(f"s_cmp_lt_u32 s{sI}, 10")
    e("s_cbranch_scc1 K1_LOOP")

    cm("row stats")
    a, b, c_, d = vT, vT + 1, vT + 2, vT + 3
    e("s_nop 3")
    e(f"v_add_f32 v{a}, v{vS1}, v{vS1+1}")
    e(f"v_add_f32 v{c_}, v{vS2}, v{vS2+1}")
    e(f"v_mov_b32 v{b}, v{a}")
    e(f"v_mov_b32 v{d}, v{c_}")
    e("s_nop 1")
    e(f"v_permlane32_swap_b32 v{a}, v{b}")
    e(f"v_permlane32_swap_b32 v{c_}, v{d}")
    e("s_nop 1")
    e(f"v_add_f32 v{a}, v{a}, v{b}")
    e(f"v_add_f32 v{c_}, v{c_}, v{d}")
    e(f"v_mul_f32 v{a}, {f32(1.0/640)}, v{a}")
    e(f"v_mul_f32 v{c_}, {f32(1.0/640)}, v{c_}")
    e(f"v_fma_f32 v{c_}, -v{a}, v{a}, v{c_}")
    e(f"v_max_f32 v{c_}, 0, v{c_}")
    e(f"v_cvt_pk_bf16_f32 v{a}, v{a}, v{a}")
    e(f"v_cvt_pk_bf16_f32 v{c_}, v{c_}, v{c_}")
    e(f"v_and_b32 v{c_}, 0xffff0000, v{c_}")
    e(f"v_add_f32 v{c_}, {f32(1e-5)}, v{c_}")
    e(f"v_cvt_pk_bf16_f32 v{c_}, v{c_}, v{c_}")
    e(f"v_and_b32 v{c_}, 0xffff0000, v{c_}")
    e(f"v_sqrt_f32 v{c_}, v{c_}")
    e("s_nop 0")
    e(f"v_cvt_pk_bf16_f32 v{c_}, v{c_}, v{c_}")
    e(f"v_and_b32 v{b}, 0xffff0000, v{c_}")
    e(f"s_lshl_b32 s{sT0}, s{sW}, 8")
    e(f"s_add_u32 s{sT0}, s{sT0}, {EX}")
    e(f"v_lshl_add_u32 v{d}, v{vM}, 3, s{sT0}")
    e(f"ds_write_b64 v{d}, {vr(a,2)}")
    e(f"s_mul_i32 s{sT0}, s{sW}, 768")
    e(f"s_add_u32 s{sT0}, s{sT0}, {EXC}")
    e(f"v_lshl_add_u32 v{c_}, v{vL}, 2, s{sT0}")
    for t in range(3):
        e(f"ds_write_b32 v{c_}, v{vCS+t} offset:{256*t}")
    e("s_waitcnt lgkmcnt(0)")
    e("s_barrier")
    vST0, vST1 = vT + 4, vT + 6
    vPC = vT + 8
    e(f"v_xor_b32 v{a}, 256, v{d}")
    e(f"ds_read_b64 {vr(vST0,2)}, v{d}")
    e(f"ds_read_b64 {vr(vST1,2)}, v{a}")
    e(f"s_xor_b32 s{sT1}, s{sW}, 2")
    e(f"s_mul_i32 s{sT0}, s{sT1}, 768")
    e(f"s_add_u32 s{sT0}, s{sT0}, {EXC}")
    e(f"v_lshl_add_u32 v{c_}, v{vL}, 2, s{sT0}")
    for t in range(3):
        e(f"ds_read_b32 v{vPC+t}, v{c_} offset:{256*t}")
    for r in (FA + 2, FA + 3, FA + 6, FA + 7, FA + 10, FA + 11, FA + 14, FA + 15, FA + 18, FA + 19):
        e(f"v_mov_b32 v{r}, 0")
    e(f"s_mov_b32 s{sT1}, 0xffff")
    e("s_waitcnt lgkmcnt(0)")
    e(f"v_mov_b32 v{FA}, v{vST0}")
    e(f"v_and_b32 v{FA+1}, 0xffff, v{vST0}")
    e(f"v_mov_b32 v{FA+4}, v{vST1}")
    e(f"v_and_b32 v{FA+5}, 0xffff, v{vST1}")
    for t in range(3):
        cc, p, q, hf = vT + 12, vT + 13, vT + 14, vT + 15
        e(f"v_add_f32 v{cc}, v{vCS+t}, v{vPC+t}")
        e(f"v_sub_f32 v{cc}, 0, v{cc}")
        e(f"v_cvt_pk_bf16_f32 v{p}, v{cc}, v{cc}")
        e(f"v_and_b32 v{hf}, 0xffff0000, v{p}")
        e(f"v_sub_f32 v{cc}, v{cc}, v{hf}")
        e(f"v_cvt_pk_bf16_f32 v{q}, v{cc}, v{cc}")
        e(f"v_and_b32 v{hf}, 0xffff0000, v{q}")
        e(f"v_sub_f32 v{cc}, v{cc}, v{hf}")
        e(f"v_bfi_b32 v{FA+8+4*t}, s{sT1}, v{p}, v{q}")
        e(f"v_cvt_pk_bf16_f32 v{FA+9+4*t}, v{cc}, 0")
    e("s_nop 1")
    for t in range(3):
        for mbi in range(2):
            a_ = ACC + (mbi * 3 + t) * 16
            e(f"v_mfma_f32_32x32x16_bf16 {vr(a_,16)}, {vr(FA+8+4*t,4)}, {vr(FA+4*mbi,4)}, {vr(a_,16)}")
    vR = vT + 12
    e(f"v_rcp_f32 v{vR}, v{vST0+1}")
    e(f"v_rcp_f32 v{vR+1}, v{vST1+1}")
    e(f"s_cmp_eq_u32 s{sTYPE}, 0")
    e("s_cbranch_scc0 K1_EPI_ATT")

    cm("ff epilogue")
    K0 = -2.0 * 0.7978845608028654 * 1.4426950408889634
    K1c = K0 * 0.044715
    vC0, vC1, vI2 = vT + 14, vT + 16, vT + 18
    vSA = vT + 20
    for mbi in range(2):
        st = (vST0, vST1)[mbi]
        e(f"v_mul_f32 v{vC0+mbi}, {f32(K0)}, v{vR+mbi}")
        e(f"v_mul_f32 v{vC1+mbi}, v{vR+mbi}, v{vR+mbi}")
        e(f"v_mul_f32 v{vC1+mbi}, v{vC1+mbi}, v{vR+mbi}")
        e(f"v_mul_f32 v{vC1+mbi}, {f32(K1c)}, v{vC1+mbi}")
        e(f"v_mul_f32 v{vI2+mbi}, v{st+1}, v{st+1}")
    e(f"v_and_b32 v{a}, 15, v{vM}")
    e(f"v_lshlrev_b32 v{a}, 4, v{a}")
    e(f"v_lshl_add_u32 v{a}, v{vH}, 8, v{a}")
    e(f"v_lshrrev_b32 v{b}, 4, v{vM}")
    e(f"v_lshl_add_u32 v{a}, v{b}, 10, v{a}")
    e(f"s_lshl_b32 s{sT0}, s{sWN}, 11")
    e(f"v_add_u32 v{vSA}, s{sT0}, v{a}")
    e(f"v_xor_b32 v{vSA+1}, 2048, v{vSA}")
    e(f"s_lshr_b32 s{sT0}, s{sR0}, 6")
    e(f"s_add_u32 s{sT0}, s{sT0}, s{sWM}")
    e(f"s_mul_i32 s{sT0}, s{sT0}, 74")
    e(f"s_mul_i32 s{sT1}, s{sC}, 3")
    e(f"s_add_u32 s{sT0}, s{sT0}, s{sT1}")
    e(f"s_add_u32 s{sT0}, s{sT0}, 20")
    e(f"s_lshl_b32 s{sT0}, s{sT0}, 12")
    e(f"s_mul_i32 s{sT1}, s{sWN}, 4608")
    e(f"s_add_u32 s{sST}, s{sT0}, s{sT1}")
    e(f"s_add_u32 s{sST+2}, s{sST}, 4096")
    e(f"s_mul_i32 s{sT1}, s{sWN}, 7680")
    e(f"s_add_u32 s{sST+1}, s{sT0}, s{sT1}")
    e(f"s_add_u32 s{sST+1}, s{sST+1}, 512")
    e("s_nop 7")
    tb = vT + 24
    for mbi in range(2):
        for t in range(3):
            A = ACC + (mbi * 3 + t) * 16
            z = tb; dd = tb + 8; o = tb + 16 + 4 * ((mbi * 3 + t) & 1)
            for j in range(8):
                e(f"v_mul_f32 v{z+j}, v{A+j}, v{A+j}")
            for j in range(8):
                e(f"v_fma_f32 v{z+j}, v{z+j}, v{vC1+mbi}, v{vC0+mbi}")
            for j in range(8):
                e(f"v_mul_f32 v{z+j}, v{z+j}, v{A+j}")
            for j in range(8):
                e(f"v_exp_f32 v{z+j}, v{z+j}")
            for j in range(8):
                e(f"v_mul_f32 v{dd+j}, v{A+j}, v{A+8+j}")
            for j in range(8):
                e(f"v_fma_f32 v{z+j}, v{z+j}, v{vI2+mbi}, v{vI2+mbi}")
            for j in range(8):
                e(f"v_rcp_f32 v{z+j}, v{z+j}")
            e("s_nop 0")
            for j in range(8):
                e(f"v_mul_f32 v{dd+j}, v{dd+j}, v{z+j}")
            for j in range(4):
                e(f"v_cvt_pk_bf16_f32 v{o+j}, v{dd+2*j}, v{dd+2*j+1}")
            e(f"buffer_store_dwordx4 {vr(o,4)}, v{vSA+mbi}, {sr(sWS,4)}, s{sST+t} offen")
    e("s_endpgm")

    lab("K1_EPI_ATT")
    cm("write q,k,v (bf16) to LDS")
    vQA = vT + 14
    e(f"s_lshl_b32 s{sT0}, s{sW}, 5")
    e(f"v_add_u32 v{a}, s{sT0}, v{vM}")
    e(f"v_xor_b32 v{b}, 32, v{a}")
    e(f"s_mul_i32 s{sT1}, s{sWN}, 96")
    e(f"v_lshlrev_b32 v{c_}, 4, v{vH}")
    e(f"v_add_u32 v{c_}, s{sT1}, v{c_}")
    e(f"s_movk_i32 s{sT2}, {QP}")
    e(f"v_mad_u32_u24 v{vQA}, v{a}, s{sT2}, v{c_}")
    e(f"v_mad_u32_u24 v{vQA+1}, v{b}, s{sT2}, v{c_}")
    e("s_nop 7")
    tb = vT + 24
    for mbi in range(2):
        for t in range(3):
            A = ACC + (mbi * 3 + t) * 16
            o = tb + 8 * ((mbi * 3 + t) & 1)
            for j in range(16):
                e(f"v_mul_f32 v{A+j}, v{A+j}, v{vR+mbi}")
            for j in range(8):
                e(f"v_cvt_pk_bf16_f32 v{o+j}, v{A+2*j}, v{A+2*j+1}")
            for R in range(2):
                for hh in range(2):
                    e(f"ds_write_b64 v{vQA+mbi}, {vr(o+4*R+2*hh,2)} offset:{192*R + 32*t + 8*hh}")
    cm("attention phase setup")
    vROW, vGR, vQR = vT, vT + 1, vT + 2
    vKR = vT + 4
    vMSK = vT + 8
    vRP = vT + 12
    vD0 = vT + 13
    vD2 = vT + 14
    e(f"v_add_u32 v{vROW}, s{sT0}, v{vM}")
    e(f"v_add_u32 v{vGR}, s{sR0}, v{vROW}")
    e(f"v_mul_u32_u24 v{vQR}, {QP}, v{vROW}")
    e(f"v_lshlrev_b32 v{vT+3}, 3, v{vH}")
    for w_ in range(4):
        e(f"v_add_u32 v{vT+15}, {2*w_}, v{vT+3}")
        e(f"v_sub_u32 v{vKR+w_}, v{vROW}, v{vT+15}")
        e(f"v_max_i32 v{vKR+w_}, 0, v{vKR+w_}")
        e(f"v_mul_u32_u24 v{vKR+w_}, {QP}, v{vKR+w_}")
        e(f"v_cmp_lt_i32 vcc, v{vGR}, v{vT+15}")
        e(f"v_mov_b32 v{vT+16}, {f32(-1e9)}")
        e("s_nop 0")
        e(f"v_cndmask_b32 v{vMSK+w_}, 0, v{vT+16}, vcc")
    e(f"v_lshrrev_b32 v{vT+15}, 6, v{vGR}")
    e(f"v_mul_u32_u24 v{vT+15}, 296, v{vT+15}")
    e(f"v_bfe_u32 v{vT+16}, v{vGR}, 4, 2")
    e(f"v_add_u32 v{vT+15}, v{vT+15}, v{vT+16}")
    e(f"v_lshlrev_b32 v{vT+15}, 10, v{vT+15}")
    e(f"v_and_b32 v{vT+16}, 15, v{vGR}")
    e(f"v_lshl_add_u32 v{vRP}, v{vT+16}, 4, v{vT+15}")
    e(f"v_mul_u32_u24 v{vD0}, 12, v{vH}")
    e(f"v_lshl_add_u32 v{vD2}, v{vH}, 1, 8")
    e(f"v_cmp_le_u32 vcc, 16, v{vROW}")
    e(f"v_cmp_gt_i32 s[{sT2}:{sT3}], 0x800, v{vGR}" if False else f"s_movk_i32 s{sT1}, 0x800")
    e(f"v_cmp_gt_i32 s[{sT2}:{sT3}], s{sT1}, v{vGR}")
    e(f"s_and_b64 s[{sEXM}:{sEXM+1}], vcc, s[{sT2}:{sT3}]")
    e(f"s_mov_b32 s{sI}, 0")
    e(f"s_cmp_eq_u32 s{sC}, 10")
    e(f"s_cselect_b32 s{sMT}, 2, 3")
    e(f"s_mul_i32 s{sST}, s{sC}, 60")
    e(f"s_mov_b32 s{sST+1}, 0x05040100")
    e(f"s_mov_b32 s{sST+2}, 0x07060302")
    e("s_waitcnt lgkmcnt(0)")
    e("s_barrier")
    Q, KK, VV, O = 44, 56, 96, 136
    LG = 160; TP = 168; PP = 176
    lab("K1_HEAD")
    for j in range(5):
        e(f"ds_read_b64 {vr(Q+2*j,2)}, v{vQR} offset:{8*j}")
    for w_ in range(4):
        for j in range(5):
            e(f"ds_read_b64 {vr(KK+10*w_+2*j,2)}, v{vKR+w_} offset:{128+8*j}")
    for w_ in range(4):
        for j in range(5):
            e(f"ds_read_b64 {vr(VV+10*w_+2*j,2)}, v{vKR+w_} offset:{256+8*j}")
    for w_ in range(4):
        e(f"v_mov_b32 v{LG+w_}, 0")
    for r in range(20):
        e(f"v_mov_b32 v{O+r}, 0")
    e("s_waitcnt lgkmcnt(15)")
    for j in range(10):
        for w_ in range(4):
            e(f"v_dot2c_f32_bf16 v{LG+w_}, v{Q+j}, v{KK+10*w_+j}")
    e("s_nop 2")
    SC = 20 ** -0.5
    e(f"v_cvt_pk_bf16_f32 v{TP}, v{LG}, v{LG+1}")
    e(f"v_cvt_pk_bf16_f32 v{TP+1}, v{LG+2}, v{LG+3}")
    for w_ in range(4):
        if w_ & 1:
            e(f"v_and_b32 v{LG+w_}, 0xffff0000, v{TP+(w_>>1)}")
        else:
            e(f"v_lshlrev_b32 v{LG+w_}, 16, v{TP+(w_>>1)}")
    for w_ in range(4):
        e(f"v_mul_f32 v{LG+w_}, {f32(SC)}, v{LG+w_}")
    e(f"v_cvt_pk_bf16_f32 v{TP}, v{LG}, v{LG+1}")
    e(f"v_cvt_pk_bf16_f32 v{TP+1}, v{LG+2}, v{LG+3}")
    for w_ in range(4):
        if w_ & 1:
            e(f"v_and_b32 v{LG+w_}, 0xffff0000, v{TP+(w_>>1)}")
        else:
            e(f"v_lshlrev_b32 v{LG+w_}, 16, v{TP+(w_>>1)}")
    for w_ in range(4):
        e(f"v_cmp_gt_f32 vcc, 0, v{vMSK+w_}")
        e("s_nop 1")
        e(f"v_cndmask_b32 v{LG+w_}, v{LG+w_}, v{vMSK+w_}, vcc")
    e(f"v_max_f32 v{TP}, v{LG}, v{LG+1}")
    e(f"v_max3_f32 v{TP}, v{TP}, v{LG+2}, v{LG+3}")
    e(f"v_mov_b32 v{TP+1}, v{TP}")
    e("s_nop 1")
    e(f"v_permlane32_swap_b32 v{TP}, v{TP+1}")
    e("s_nop 1")
    e(f"v_max_f32 v{TP}, v{TP}, v{TP+1}")
    for w_ in range(4):
        e(f"v_sub_f32 v{LG+w_}, v{LG+w_}, v{TP}")
    for w_ in range(4):
        e(f"v_mul_f32 v{LG+w_}, {f32(1.4426950408889634)}, v{LG+w_}")
    for w_ in range(4):
        e(f"v_exp_f32 v{LG+w_}, v{LG+w_}")
    e("s_nop 0")
    e(f"v_add_f32 v{TP}, v{LG}, v{LG+1}")
    e(f"v_add_f32 v{TP+1}, v{LG+2}, v{LG+3}")
    e(f"v_add_f32 v{TP}, v{TP}, v{TP+1}")
    e(f"v_mov_b32 v{TP+1}, v{TP}")
    e("s_nop 1")
    e(f"v_permlane32_swap_b32 v{TP}, v{TP+1}")
    e("s_nop 1")
    e(f"v_add_f32 v{TP}, v{TP}, v{TP+1}")
    e(f"v_rcp_f32 v{TP}, v{TP}")
    e("s_nop 0")
    for w_ in range(4):
        e(f"v_mul_f32 v{LG+w_}, v{LG+w_}, v{TP}")
    e(f"v_cvt_pk_bf16_f32 v{PP}, v{LG}, v{LG+1}")
    e(f"v_cvt_pk_bf16_f32 v{PP+1}, v{LG+2}, v{LG+3}")
    e("s_waitcnt lgkmcnt(0)")
    for j in range(10):
        for wp in range(2):
            v0_, v1_ = VV + 20 * wp + j, VV + 20 * wp + 10 + j
            tl, th = TP + 2 * wp, TP + 2 * wp + 1
            e(f"v_perm_b32 v{tl}, v{v1_}, v{v0_}, s{sST+1}")
            e(f"v_perm_b32 v{th}, v{v1_}, v{v0_}, s{sST+2}")
        for wp in range(2):
            tl, th = TP + 2 * wp, TP + 2 * wp + 1
            e(f"v_dot2c_f32_bf16 v{O+2*j}, v{PP+wp}, v{tl}")
            e(f"v_dot2c_f32_bf16 v{O+2*j+1}, v{PP+wp}, v{th}")
    e("s_nop 3")
    bl = [12, 13, 14, 15, 16, 17, 18, 19, 10, 11]
    for j in range(10):
        e(f"v_permlane32_swap_b32 v{O+j}, v{O+bl[j]}")
    e("s_nop 1")
    for j in range(10):
        e(f"v_add_f32 v{O+j}, v{O+j}, v{O+bl[j]}")
    OUT = 180
    for j in range(5):
        e(f"v_cvt_pk_bf16_f32 v{OUT+j}, v{O+2*j}, v{O+2*j+1}")
    AD = 188
    for s_ in range(3):
        if s_ < 2:
            e(f"v_add_u32 v{TP}, s{sST}, v{vD0}")
            if s_ == 1:
                e(f"v_add_u32 v{TP}, 4, v{TP}")
        else:
            e(f"v_add_u32 v{TP}, s{sST}, v{vD2}")
        e(f"v_lshrrev_b32 v{TP+1}, 5, v{TP}")
        e(f"v_lshl_add_u32 v{AD+s_}, v{TP+1}, 12, v{vRP}")
        e(f"v_bfe_u32 v{TP+1}, v{TP}, 3, 2")
        e(f"v_lshl_add_u32 v{AD+s_}, v{TP+1}, 8, v{AD+s_}")
        e(f"v_and_b32 v{TP+1}, 7, v{TP}")
        e(f"v_lshl_add_u32 v{AD+s_}, v{TP+1}, 1, v{AD+s_}")
    e(f"s_mov_b64 exec, s[{sEXM}:{sEXM+1}]")
    e("s_cbranch_execz K1_NOST")
    e(f"buffer_store_dwordx2 {vr(OUT,2)}, v{AD}, {sr(sWS,4)}, 0 offen")
    e(f"buffer_store_dwordx2 {vr(OUT+2,2)}, v{AD+1}, {sr(sWS,4)}, 0 offen")
    e(f"buffer_store_dword v{OUT+4}, v{AD+2}, {sr(sWS,4)}, 0 offen")
    lab("K1_NOST")
    e(f"s_mov_b64 exec, s[{sFULL}:{sFULL+1}]")
    e(f"v_add_u32 v{vQR}, 40, v{vQR}")
    for w_ in range(4):
        e(f"v_add_u32 v{vKR+w_}, 40, v{vKR+w_}")
    e(f"s_add_u32 s{sST}, s{sST}, 20")
    e(f"s_add_u32 s{sI}, s{sI}, 1")
    e(f"s_cmp_lt_u32 s{sI}, s{sMT}")
    e("s_cbranch_scc1 K1_HEAD")
    e("s_endpgm")

    lab("K1_SPARE")
    sSP = sC
    e(f"s_mov_b32 s{sSP}, s{sT1}")
    e("s_waitcnt lgkmcnt(0)")
    srd(sWA, 28, 640 * 1280)
    srd(sWB, 36, 1728 * 1280)
    srd(sWS, 38, WS_USED)
    vDV = 4
    vRA = 10
    vKY = 11
    vSO = 12
    e(f"s_mul_i32 s{sT0}, s{sW}, 320")
    e(f"s_mov_b32 s{sT1}, 52429")
    e(f"s_movk_i32 s{sT2}, 1280")
    for q in range(5):
        e(f"v_add_u32 v{t0}, s{sT0}, v{vL}")
        if q: e(f"v_add_u32 v{t0}, {64*q}, v{t0}")
        e(f"v_mul_lo_u32 v{t1}, v{t0}, s{sT1}")
        e(f"v_lshrrev_b32 v{t1}, 22, v{t1}")
        e(f"v_mul_u32_u24 v{t2}, 80, v{t1}")
        e(f"v_sub_u32 v{t0}, v{t0}, v{t2}")
        e(f"v_and_b32 v{t2}, 3, v{t1}")
        e(f"v_bfe_u32 v{t3}, v{t1}, 3, 1")
        e(f"v_lshl_add_u32 v{t2}, v{t3}, 2, v{t2}")
        e(f"v_lshlrev_b32 v{t2}, 1, v{t2}")
        e(f"v_xor_b32 v{t0}, v{t0}, v{t2}")
        e(f"v_mul_lo_u32 v{t1}, v{t1}, s{sT2}")
        e(f"v_lshl_add_u32 v{vDV+q}, v{t0}, 4, v{t1}")
    e(f"v_lshrrev_b32 v{t0}, 4, v{vL}")
    e(f"v_bfe_u32 v{t1}, v{vL}, 2, 2")
    e(f"v_lshl_add_u32 v{t2}, v{t0}, 3, v{t1}")
    e(f"v_mul_lo_u32 v{t2}, v{t2}, s{sT2}")
    e(f"v_and_b32 v{t3}, 3, v{vL}")
    e(f"v_lshl_add_u32 v{vRA}, v{t3}, 3, v{t2}")
    e(f"v_and_b32 v{t0}, 1, v{t0}")
    e(f"v_lshl_add_u32 v{t0}, v{t0}, 2, v{t1}")
    e(f"v_lshlrev_b32 v{vKY}, 5, v{t0}")
    e(f"v_lshlrev_b32 v{vSO}, 4, v{vL}")
    e(f"s_mov_b32 s{sI}, 0")
    sKB = sR0
    lab("K1_SP_ROUND")
    for jj in range(3):
        e(f"s_mul_i32 s{sKB}, s{sI}, 39")
        e(f"s_add_u32 s{sKB}, s{sKB}, s{sSP}")
        e(f"s_add_u32 s{sKB}, s{sKB}, {13*jj}")
        e(f"s_cmp_lt_u32 s{sKB}, 74")
        e(f"s_cbranch_scc0 K1_SP_NOLD{jj}")
        e(f"s_mul_i32 s{sXD}, s{sW}, 5120")
        e(f"s_add_u32 s{sXD}, s{sXD}, {40960*jj}")
        e(f"s_cmp_lt_u32 s{sKB}, 20")
        e(f"s_cbranch_scc0 K1_SP_DN{jj}")
        e(f"s_mul_i32 s{sXSO}, s{sKB}, 40960")
        for q in range(5):
            e(f"s_add_u32 m0, s{sXD}, {1024*q}")
            e("s_nop 0")
            e(f"buffer_load_dwordx4 v{vDV+q}, {sr(sWA,4)}, s{sXSO} offen lds")
        e(f"s_branch K1_SP_NOLD{jj}")
        lab(f"K1_SP_DN{jj}")
        e(f"s_sub_u32 s{sXSO}, s{sKB}, 20")
        e(f"s_mul_i32 s{sXSO}, s{sXSO}, 40960")
        for q in range(5):
            e(f"s_add_u32 m0, s{sXD}, {1024*q}")
            e("s_nop 0")
            e(f"buffer_load_dwordx4 v{vDV+q}, {sr(sWB,4)}, s{sXSO} offen lds")
        lab(f"K1_SP_NOLD{jj}")
    e("s_waitcnt vmcnt(0)")
    e("s_barrier")
    for jj in range(3):
        e(f"s_mul_i32 s{sKB}, s{sI}, 39")
        e(f"s_add_u32 s{sKB}, s{sKB}, s{sSP}")
        e(f"s_add_u32 s{sKB}, s{sKB}, {13*jj}")
        e(f"s_cmp_lt_u32 s{sKB}, 74")
        e(f"s_cbranch_scc0 K1_SP_NOST{jj}")
        e(f"s_mul_i32 s{sT0}, s{sW}, 160")
        for j in range(5):
            e(f"s_add_u32 s{sT1}, s{sT0}, {32*j}")
            e(f"v_xad_u32 v{vTA}, v{vKY}, s{sT1}, v{vRA}")
            e(f"ds_read_b64_tr_b16 {vr(24+4*j,2)}, v{vTA} offset:{40960*jj - (40960 if jj==2 else 0)}"
              if jj < 2 else f"v_add_u32 v{vTA}, 40960, v{vTA}")
            if jj == 2:
                e(f"ds_read_b64_tr_b16 {vr(24+4*j,2)}, v{vTA} offset:40960")
                e(f"ds_read_b64_tr_b16 {vr(26+4*j,2)}, v{vTA} offset:{40960+5120}")
            else:
                e(f"ds_read_b64_tr_b16 {vr(26+4*j,2)}, v{vTA} offset:{40960*jj+5120}")
        e(f"s_mul_i32 s{sT0}, s{sW}, 74")
        e(f"s_add_u32 s{sT0}, s{sT0}, s{sKB}")
        e(f"s_mul_i32 s{sT0}, s{sT0}, 5120")
        e(f"s_add_u32 s{sT0}, s{sT0}, {W2_OFF}")
        e(f"s_add_u32 s{sT1}, s{sT0}, 4096")
        e("s_waitcnt lgkmcnt(0)")
        for j in range(4):
            e(f"buffer_store_dwordx4 {vr(24+4*j,4)}, v{vSO}, {sr(sWS,4)}, s{sT0} offen offset:{1024*j}")
        e(f"buffer_store_dwordx4 {vr(40,4)}, v{vSO}, {sr(sWS,4)}, s{sT1} offen")
        e("s_nop 1")
        lab(f"K1_SP_NOST{jj}")
    e("s_waitcnt vmcnt(0)")
    e("s_barrier")
    e(f"s_add_u32 s{sI}, s{sI}, 1")
    e(f"s_cmp_lt_u32 s{sI}, 2")
    e("s_cbranch_scc1 K1_SP_ROUND")
    lab("K1_END")
    e("s_endpgm")

K2_PITCH = 336
K2_LDS = 4 * 64 * K2_PITCH
def k2():
    P = OPT["k2_P"]
    sWS, sX, sO = 8, 12, 16
    sW, sMT, sNT = 40, 41, 42
    sA, sB = 43, 44
    sT0, sT1, sT2 = 46, 47, 48
    vL, vO1, vO2 = 1, 2, 3
    vXO = 4
    vT = 10
    XR = 20
    ACC = 32
    STG = 112
    L.append(".p2align 8")
    lab("k2_kernel")
    e("s_cmp_ge_u32 s2, 256")
    e("s_cbranch_scc1 K2_END")
    e("s_load_dwordx2 s[24:25], s[0:1], 0")
    e("s_load_dwordx2 s[26:27], s[0:1], 56")
    e("s_load_dwordx2 s[28:29], s[0:1], 72")
    e(f"v_lshrrev_b32 v{vT}, 6, v0")
    e(f"v_and_b32 v{vL}, 63, v0")
    e(f"v_readfirstlane_b32 s{sW}, v{vT}")
    e(f"v_lshlrev_b32 v{vO1}, 4, v{vL}")
    e(f"v_add_u32 v{vO2}, 4096, v{vO1}")
    e(f"s_and_b32 s{sT0}, s2, 7")
    e(f"s_lshr_b32 s{sT1}, s2, 3")
    e(f"s_and_b32 s{sMT}, s{sT0}, 3")
    e(f"s_lshl_b32 s{sMT}, s{sMT}, 3")
    e(f"s_and_b32 s{sT2}, s{sT1}, 7")
    e(f"s_add_u32 s{sMT}, s{sMT}, s{sT2}")
    e(f"s_lshr_b32 s{sNT}, s{sT0}, 2")
    e(f"s_lshl_b32 s{sNT}, s{sNT}, 2")
    e(f"s_lshr_b32 s{sT2}, s{sT1}, 3")
    e(f"s_add_u32 s{sNT}, s{sNT}, s{sT2}")
    e(f"s_mul_i32 s{sA}, s{sMT}, 74")
    e(f"s_add_u32 s{sA}, s{sA}, s{sW}")
    e(f"s_lshl_b32 s{sA}, s{sA}, 12")
    e(f"s_mul_i32 s{sB}, s{sNT}, 74")
    e(f"s_add_u32 s{sB}, s{sB}, s{sW}")
    e(f"s_mul_i32 s{sB}, s{sB}, 5120")
    e(f"s_add_u32 s{sB}, s{sB}, {W2_OFF}")
    e("s_waitcnt lgkmcnt(0)")
    srd(sWS, 28, WS_USED)
    srd(sX, 24, 2048 * 1280)
    srd(sO, 26, 2048 * 1280)
    def loads(st):
        R = STG + 36 * (st % P)
        for j in range(4):
            e(f"buffer_load_dwordx4 {vr(R+4*j,4)}, v{vO1}, {sr(sWS,4)}, s{sA} offen offset:{1024*j}")
        for j in range(4):
            e(f"buffer_load_dwordx4 {vr(R+16+4*j,4)}, v{vO1}, {sr(sWS,4)}, s{sB} offen offset:{1024*j}")
        e(f"buffer_load_dwordx4 {vr(R+32,4)}, v{vO2}, {sr(sWS,4)}, s{sB} offen")
        if st == 17:
            e(f"s_cmp_lt_u32 s{sW}, 2")
            e(f"s_cselect_b32 s{sT0}, {4*4096}, 0")
            e(f"s_cselect_b32 s{sT1}, {4*5120}, 0")
            e(f"s_add_u32 s{sA}, s{sA}, s{sT0}")
            e(f"s_add_u32 s{sB}, s{sB}, s{sT1}")
        else:
            e(f"s_add_u32 s{sA}, s{sA}, {4*4096}")
            e(f"s_add_u32 s{sB}, s{sB}, {4*5120}")
    for st in range(P):
        loads(st)
    e(f"s_mov_b32 s{sT0}, 0xcccd")
    e(f"s_lshl_b32 s{sT1}, s{sMT}, 6")
    e(f"s_mul_i32 s{sT1}, s{sT1}, 1280")
    e(f"s_mul_i32 s{sT2}, s{sNT}, 160")
    e(f"s_add_u32 s{sT1}, s{sT1}, s{sT2}")
    e(f"s_movk_i32 s{sT2}, 1280")
    vLA = 14
    for i in range(5):
        e(f"v_add_u32 v{vT}, {256*i}, v0")
        e(f"v_mul_lo_u32 v{vT+1}, v{vT}, s{sT0}")
        e(f"v_lshrrev_b32 v{vT+1}, 20, v{vT+1}")
        e(f"v_mul_u32_u24 v{vT+2}, 20, v{vT+1}")
        e(f"v_sub_u32 v{vT}, v{vT}, v{vT+2}")
        e(f"v_mul_u32_u24 v{vT+2}, {K2_PITCH}, v{vT+1}")
        e(f"v_lshl_add_u32 v{vLA+i}, v{vT}, 4, v{vT+2}")
        e(f"v_mul_lo_u32 v{vT+1}, v{vT+1}, s{sT2}")
        e(f"v_lshl_add_u32 v{vT+1}, v{vT}, 3, v{vT+1}")
        e(f"v_add_u32 v{vXO+i}, s{sT1}, v{vT+1}")
    for r in range(ACC, ACC + 80):
        e(f"v_mov_b32 v{r}, 0")
    NST = 19
    for st in range(NST):
        issued_after = min(NST, st + P) - (st + 1)
        if st == 18:
            e(f"s_cmp_lt_u32 s{sW}, 2")
            e("s_cbranch_scc0 K2_RED")
        extra = 5 if st >= NST - P + 1 else 0
        e(f"s_waitcnt vmcnt({9*issued_after + extra})")
        R = STG + 36 * (st % P)
        for j in range(5):
            for mb in range(4):
                a = ACC + (mb * 5 + j) * 4
                e(f"v_mfma_f32_16x16x32_bf16 {vr(a,4)}, {vr(R+16+4*j,4)}, {vr(R+4*mb,4)}, {vr(a,4)}")
        if st + P < NST:
            loads(st + P)
        if st + P == NST:
            for i in range(5):
                e(f"buffer_load_dwordx2 {vr(XR+2*i,2)}, v{vXO+i}, {sr(sX,4)}, 0 offen")
    lab("K2_RED")
    e(f"v_and_b32 v{vT}, 15, v{vL}")
    e(f"v_mul_u32_u24 v{vT}, {K2_PITCH}, v{vT}")
    e(f"v_lshrrev_b32 v{vT+1}, 4, v{vL}")
    e(f"v_lshl_add_u32 v{vT}, v{vT+1}, 4, v{vT}")
    e(f"s_mul_i32 s{sT0}, s{sW}, {64*K2_PITCH}")
    e(f"v_add_u32 v{vT}, s{sT0}, v{vT}")
    e("s_nop 7")
    for mb in range(4):
        for j in range(5):
            a = ACC + (mb * 5 + j) * 4
            e(f"ds_write_b128 v{vT}, {vr(a,4)} offset:{16*mb*K2_PITCH + 64*j}")
    e("s_waitcnt lgkmcnt(0)")
    e("s_barrier")
    RB = ACC
    for i in range(5):
        for w_ in range(4):
            off = w_ * 64 * K2_PITCH
            if off < 65536:
                e(f"ds_read_b128 {vr(RB+16*i+4*w_,4)}, v{vLA+i} offset:{off}")
            else:
                e(f"v_add_u32 v{vT}, {off}, v{vLA+i}")
                e(f"ds_read_b128 {vr(RB+16*i+4*w_,4)}, v{vT}")
    e("s_waitcnt vmcnt(0)")
    for i in range(5):
        e(f"s_waitcnt lgkmcnt({max(0, min(15, 4*(4-i)))})")
        b = RB + 16 * i
        for c in range(4):
            e(f"v_add_f32 v{b+c}, v{b+c}, v{b+4+c}")
            e(f"v_add_f32 v{b+8+c}, v{b+8+c}, v{b+12+c}")
        e(f"v_lshlrev_b32 v{b+4}, 16, v{XR+2*i}")
        e(f"v_and_b32 v{b+5}, 0xffff0000, v{XR+2*i}")
        e(f"v_lshlrev_b32 v{b+6}, 16, v{XR+2*i+1}")
        e(f"v_and_b32 v{b+7}, 0xffff0000, v{XR+2*i+1}")
        for c in range(4):
            e(f"v_add_f32 v{b+c}, v{b+c}, v{b+8+c}")
        for c in range(4):
            e(f"v_add_f32 v{b+c}, v{b+c}, v{b+4+c}")
        e(f"v_cvt_pk_bf16_f32 v{b+8}, v{b}, v{b+1}")
        e(f"v_cvt_pk_bf16_f32 v{b+9}, v{b+2}, v{b+3}")
        e(f"buffer_store_dwordx2 {vr(b+8,2)}, v{vXO+i}, {sr(sO,4)}, 0 offen")
    lab("K2_END")
    e("s_endpgm")
    return STG + 36 * P

hdr = open("cdna_kernels/%s.s.ref" % NAME).read().split("; Override launch")[0]
out = [hdr.rstrip()]
out.append(f"; @launch kernel=k1_kernel grid=(256,1,1) block=(512,1,1) lds={K1_LDS}")
out.append(f"; @launch kernel=k2_kernel grid=(256,1,1) block=(256,1,1) lds={K2_LDS}")
out.append('.amdgcn_target "amdgcn-amd-amdhsa--gfx950"')
out.append(".text")
out.append(".globl k1_kernel\n.type k1_kernel,@function\n.globl k2_kernel\n.type k2_kernel,@function")
out.append(".p2align 8")
k1()
k2v = k2()
out += L
def kd(name, nv, acc):
    return f""".amdhsa_kernel {name}
  .amdhsa_next_free_vgpr {nv}
  .amdhsa_next_free_sgpr 96
  .amdhsa_accum_offset {acc}
  .amdhsa_group_segment_fixed_size 0
  .amdhsa_kernarg_size 80
  .amdhsa_user_sgpr_count 2
  .amdhsa_user_sgpr_kernarg_segment_ptr 1
  .amdhsa_system_sgpr_workgroup_id_x 1
.end_amdhsa_kernel"""
out.append('.section .rodata,"a"')
out.append(".p2align 6")
out.append(kd("k1_kernel", 224, 224))
out.append(".p2align 6")
out.append(kd("k2_kernel", k2v, (k2v + 3) // 4 * 4))
open(sys.argv[1], "w").write("\n".join(out) + "\n")
```

```python
import sys, struct

NAME = "parallel_sum__sliding_local_dilated__glu_gated_geglu__prompt"
OPT = dict(stats=1, k2_P=4, prof=0, wt=0, pf=1, pfd=3, rpg=2, noadv=0, nodma=0, nomfma=0, nolds=0)
for a in sys.argv[2:]:
    k, v = a.split("=")
    OPT[k] = int(v)

L = []
WT = ['', ' sc0 sc1', ' nt', ' sc1', ' sc0 sc1 nt'][OPT['wt']]
def e(s): L.append("    " + s)
def lab(s): L.append(s + ":")
def cm(s): L.append("    ; " + s)
def f32(x): return "0x%08x" % struct.unpack("<I", struct.pack("<f", x))[0]
def vr(a, n): return "v[%d:%d]" % (a, a + n - 1)
def sr(a, n): return "s[%d:%d]" % (a, a + n - 1)

A2_BYTES = 32 * 74 * 4096
W2_OFF = 0xA00000
W2_BYTES = 8 * 74 * 5120
WS_USED = W2_OFF + W2_BYTES
PROF_OFF = 0x2000000
if OPT['prof']: WS_USED = PROF_OFF + 0x100000

XSLOT = 32768
WBASE = 3 * XSLOT
WREGB = 6176
WSLOT = 12352
EX = 102400
EXC = EX + 2048
QP = 392
K1_LDS = 163840

def srd(d, b, nbytes):
    e(f"s_mov_b32 s{d}, s{b}")
    e(f"s_and_b32 s{d+1}, s{b+1}, 0xffff")
    e(f"s_mov_b32 s{d+2}, {nbytes}")
    e(f"s_mov_b32 s{d+3}, 0x00020000")

def stamp(i):
    if OPT["prof"]:
        e(f"s_memrealtime s[{80+2*i}:{81+2*i}]")
def stamp_store(kidx, n, sWS, sW, vt):
    if not OPT["prof"]: return
    e(f"s_memrealtime s[{80+2*(n-1)}:{81+2*(n-1)}]")
    e("s_waitcnt lgkmcnt(0)")
    e(f"s_lshl_b32 s94, s2, 3")
    e(f"s_add_u32 s94, s94, s{sW}")
    e(f"s_lshl_b32 s94, s94, 5")
    e(f"s_add_u32 s94, s94, {PROF_OFF + kidx*0x40000}")
    e(f"v_mov_b32 v{vt+8}, 0")
    for i in range(n):
        e(f"v_mov_b32 v{vt+i}, s{80+2*i}")
    for i in range(n, 8):
        e(f"v_mov_b32 v{vt+i}, 0")
    e("s_mov_b64 exec, 1")
    e(f"buffer_store_dwordx4 {vr(vt,4)}, v{vt+8}, {sr(sWS,4)}, s94 offen")
    e(f"buffer_store_dwordx4 {vr(vt+4,4)}, v{vt+8}, {sr(sWS,4)}, s94 offen offset:16")

def k1():
    sX, sWA, sWB, sWS = 8, 12, 16, 20
    sW, sWM, sWN, sROT = 40, 41, 42, 43
    sTYPE, sC, sR0, sPITCH = 44, 45, 46, 47
    sJ, sOB, sCOLB = 48, 49, 50
    sI = 51
    sXSO, sWSO, sWSTEP = 52, 53, 54
    sXD, sWD = 55, 56
    sXR, sWR = 57, 58
    sT0, sT1, sT2, sT3 = 60, 61, 62, 63
    sEXM = 64
    sONE = 66
    sFULL = 68
    sST = 70
    sMT = 73
    vL, vM, vH = 1, 2, 3
    vXV = 72
    vWVA, vWVB = 8, 9
    vXB, vWA0, vWA1 = 10, 11, 12
    vTA = 13
    vXB0, vWB0, vWB1 = 21, 22, 23
    vS1, vS2 = 14, 16
    vCS = 18
    vT = 24
    FA, FB = 88, 108
    ACC = 128

    vWV, vPF, vDUM = 80, 83, 84
    sMAXR, sPFS = 74, 75
    sPF = 76
    def piece_x(i):
        r = []
        if i == 0: r.append(f"s_mov_b32 m0, s{sXD}")
        else: r.append(f"s_add_u32 m0, s{sXD}, {1024*i}")
        r.append("s_nop 0")
        r.append(f"buffer_load_dwordx4 v{vXV+i}, {sr(sX,4)}, s{sXSO} offen lds")
        if i == 7:
            r += [f"s_add_u32 s{sXD}, s{sXD}, {XSLOT}", f"s_add_u32 s{sXSO}, s{sXSO}, {0 if OPT['noadv'] else 128}",
                  f"s_cmp_ge_u32 s{sXD}, {3*XSLOT}", f"s_cselect_b32 s{sT0}, {3*XSLOT}, 0",
                  f"s_sub_u32 s{sXD}, s{sXD}, s{sT0}"]
        return r
    def piece_w(i):
        r = []
        if i == 0: r.append(f"s_mov_b32 m0, s{sWD}")
        else: r.append(f"s_add_u32 m0, s{sWD}, {1024*i}")
        r.append("s_nop 0")
        r.append(f"buffer_load_dwordx4 v{vWV+i}, {sr(sWA,4)}, s{sWSO} offen lds")
        if i == 2:
            r += [f"s_add_u32 s{sWD}, s{sWD}, {WSLOT}",
                f"s_add_u32 s{sWSO}, s{sWSO}, 0" if OPT['noadv'] else f"s_add_u32 s{sWSO}, s{sWSO}, s{sWSTEP}",
                f"s_cmp_ge_u32 s{sWD}, {WBASE + 5*WSLOT}",
                f"s_cselect_b32 s{sT0}, {5*WSLOT}, 0",
                f"s_sub_u32 s{sWD}, s{sWD}, s{sT0}"]
        return r
    def piece_pf():
        if not OPT["pf"]: return []
        return [f"buffer_load_dword v{vDUM}, v{vPF}, {sr(sPF,4)}, s{sXSO} offen",
                f"s_add_u32 s{sXSO}, s{sXSO}, s{sPFS}"]
    def pf_setup():
        t0, t1, t2, t3 = vT, vT + 1, vT + 2, vT + 3
        e(f"s_and_b32 s{sT0}, s2, 7")
        e(f"s_lshr_b32 s{sT1}, s2, 3")
        e(f"s_and_b32 s{sT2}, s{sT0}, 1")
        e(f"s_lshr_b32 s{sT3}, s{sT0}, 1")
        e(f"s_cmp_eq_u32 s{sW}, 4")
        e(f"s_cbranch_scc0 K1_PF_W{pf_setup.n}")
        srd(sPF, 24, 2048 * 1280)
        e(f"s_lshl_b32 s{sT2}, s{sT2}, 10")
        e(f"s_mul_i32 s{sT1}, s{sT1}, 40")
        e(f"s_add_u32 s{sT1}, s{sT1}, s{sT2}")
        e(f"v_add_u32 v{t0}, s{sT1}, v{vL}")
        e(f"v_mul_u32_u24 v{vPF}, 1280, v{t0}")
        e(f"v_cmp_gt_u32 vcc, 40, v{vL}")
        e(f"s_movk_i32 s{sPFS}, 128")
        e(f"s_movk_i32 s{sXSO}, 256")
        e(f"s_branch K1_PF_E{pf_setup.n}")
        lab(f"K1_PF_W{pf_setup.n}")
        e(f"s_cmp_eq_u32 s{sW}, 7")
        e(f"s_cbranch_scc1 K1_PF_Q{pf_setup.n}")
        e(f"s_cmp_eq_u32 s{sW}, 5")
        e(f"s_cselect_b32 s{sPF}, s32, s34")
        e(f"s_cselect_b32 s{sPF+1}, s33, s35")
        srd(sPF, sPF, 640 * 1728 * 2)
        e(f"s_mul_i32 s{sT3}, s{sT3}, 18")
        e(f"s_lshr_b32 s{sT3}, s{sT3}, 2")
        e(f"s_mul_i32 s{sT3}, s{sT3}, 192")
        e(f"s_mul_i32 s{sT1}, s{sT1}, 6912")
        e(f"s_add_u32 s{sT1}, s{sT1}, s{sT3}")
        e(f"v_lshrrev_b32 v{t0}, 4, v{vL}")
        e(f"v_and_b32 v{t1}, 15, v{vL}")
        e(f"v_mul_u32_u24 v{t2}, 3456, v{t0}")
        e(f"v_lshl_add_u32 v{t2}, v{t1}, 7, v{t2}")
        e(f"v_add_u32 v{vPF}, s{sT1}, v{t2}")
        e(f"v_lshl_add_u32 v{t0}, v{t0}, 3, v{t1}")
        e(f"v_cmp_gt_u32 vcc, 8, v{t1}")
        e(f"v_cmp_gt_u32 s[{sT2}:{sT3}], 32, v{vL}")
        e(f"s_and_b64 vcc, vcc, s[{sT2}:{sT3}]")
        e(f"s_mov_b32 s{sPFS}, {64*3456}")
        e(f"s_mov_b32 s{sXSO}, {128*3456}")
        e(f"s_branch K1_PF_E{pf_setup.n}")
        lab(f"K1_PF_Q{pf_setup.n}")
        srd(sPF, 26, 640 * 1920 * 2)
        e(f"s_mul_i32 s{sT3}, s{sT3}, 14")
        e(f"s_mul_i32 s{sT0}, s{sT3}, 205")
        e(f"s_lshr_b32 s{sT0}, s{sT0}, 10")
        e(f"s_lshr_b32 s{sT3}, s{sT3}, 2")
        e(f"s_cmp_eq_u32 s{sT2}, 0")
        e(f"s_cselect_b32 s{sT3}, s{sT0}, s{sT3}")
        e(f"s_mul_i32 s{sT3}, s{sT3}, 120")
        e(f"s_mul_i32 s{sT1}, s{sT1}, 7680")
        e(f"s_add_u32 s{sT1}, s{sT1}, s{sT3}")
        e(f"v_lshrrev_b32 v{t0}, 3, v{vL}")
        e(f"v_and_b32 v{t1}, 7, v{vL}")
        e(f"v_mul_u32_u24 v{t2}, 1280, v{t0}")
        e(f"v_lshl_add_u32 v{t2}, v{t1}, 7, v{t2}")
        e(f"v_add_u32 v{vPF}, s{sT1}, v{t2}")
        e(f"v_cmp_gt_u32 vcc, 5, v{t1}")
        e(f"v_cmp_gt_u32 s[{sT2}:{sT3}], 48, v{vL}")
        e(f"s_and_b64 vcc, vcc, s[{sT2}:{sT3}]")
        e(f"s_mov_b32 s{sPFS}, {64*3840}")
        e(f"s_mov_b32 s{sXSO}, {128*3840}")
        lab(f"K1_PF_E{pf_setup.n}")
        e(f"v_mov_b32 v{t0}, 0x7f000000")
        e(f"v_cndmask_b32 v{vPF}, v{t0}, v{vPF}, vcc")
        pf_setup.n += 1
    pf_setup.n = 0

    lab(f"k1_kernel")
    e("s_cmp_ge_u32 s2, 256")
    e("s_cbranch_scc1 K1_END")
    stamp(0)
    e("s_load_dwordx4 s[24:27], s[0:1], 0")
    e("s_load_dwordx2 s[28:29], s[0:1], 16")
    e("s_load_dwordx4 s[32:35], s[0:1], 32")
    e("s_load_dwordx2 s[36:37], s[0:1], 48")
    e("s_load_dwordx2 s[38:39], s[0:1], 72")
    e(f"v_lshrrev_b32 v{vT}, 6, v0")
    e(f"v_and_b32 v{vL}, 63, v0")
    e(f"v_readfirstlane_b32 s{sW}, v{vT}")
    e(f"v_and_b32 v{vM}, 31, v0")
    e(f"v_bfe_u32 v{vH}, v0, 5, 1")
    cm("role decode")
    e(f"s_movk_i32 s{sMAXR}, 0x7ff")
    e(f"s_and_b32 s{sT0}, s2, 7")
    e(f"s_lshr_b32 s{sT1}, s2, 3")
    e(f"s_and_b32 s{sT2}, s{sT0}, 1")
    e(f"s_lshr_b32 s{sT3}, s{sT0}, 1")
    e(f"s_lshr_b32 s{sWM}, s{sW}, 1")
    e(f"s_and_b32 s{sWN}, s{sW}, 1")
    e(f"s_and_b32 s{sROT}, s{sWM}, 1")
    e(f"s_cmp_lt_u32 s{sT1}, 18")
    e("s_cbranch_scc0 K1_NOTFF")
    cm("ff")
    e(f"s_mul_i32 s{sT0}, s{sT3}, 18")
    e(f"s_add_u32 s{sT0}, s{sT0}, s{sT1}")
    e(f"s_lshr_b32 s{sC}, s{sT0}, 2")
    e(f"s_and_b32 s{sT0}, s{sT0}, 3")
    e(f"s_lshl_b32 s{sT2}, s{sT2}, 2")
    e(f"s_add_u32 s{sT0}, s{sT0}, s{sT2}")
    e(f"s_lshl_b32 s{sR0}, s{sT0}, 8")
    e(f"s_mov_b32 s{sTYPE}, 0")
    e(f"s_movk_i32 s{sPITCH}, 3456")
    e(f"s_mov_b32 s{sJ}, 0")
    e(f"s_mov_b32 s{sOB}, 0")
    e(f"s_mul_i32 s{sCOLB}, s{sC}, 192")
    e("s_waitcnt lgkmcnt(0)")
    srd(sWA, 32, 640 * 1728 * 2)
    srd(sWB, 34, 640 * 1728 * 2)
    e("s_branch K1_COMMON")
    lab("K1_NOTFF")
    e(f"s_mul_i32 s{sT0}, s{sT3}, 14")
    e(f"s_add_u32 s{sT0}, s{sT0}, s{sT1}")
    e(f"s_sub_u32 s{sT0}, s{sT0}, 18")
    e(f"s_cmp_eq_u32 s{sT2}, 0")
    e("s_cbranch_scc0 K1_MH1")
    e(f"s_mov_b32 s{sT1}, 0")
    e(f"s_cmp_lt_u32 s{sT0}, 55")
    e("s_cbranch_scc0 K1_SPARE")
    e(f"s_mul_i32 s{sC}, s{sT0}, 205")
    e(f"s_lshr_b32 s{sC}, s{sC}, 10")
    e(f"s_mul_i32 s{sT1}, s{sC}, 5")
    e(f"s_sub_u32 s{sT1}, s{sT0}, s{sT1}")
    e("s_branch K1_ATT")
    lab("K1_MH1")
    e(f"s_sub_u32 s{sT1}, s{sT0}, 43")
    e(f"s_cmp_lt_u32 s{sT0}, 44")
    e("s_cbranch_scc0 K1_SPARE")
    e(f"s_lshr_b32 s{sC}, s{sT0}, 2")
    e(f"s_and_b32 s{sT1}, s{sT0}, 3")
    e(f"s_add_u32 s{sT1}, s{sT1}, 5")
    lab("K1_ATT")
    e(f"s_mul_i32 s{sR0}, s{sT1}, 240")
    e(f"s_sub_u32 s{sR0}, s{sR0}, 16")
    e(f"s_mov_b32 s{sTYPE}, 1")
    e(f"s_movk_i32 s{sPITCH}, 3840")
    e(f"s_movk_i32 s{sJ}, 1152")
    e(f"s_movk_i32 s{sOB}, 1344")
    e(f"s_mul_i32 s{sCOLB}, s{sC}, 120")
    e("s_waitcnt lgkmcnt(0)")
    srd(sWA, 26, 640 * 1920 * 2)
    srd(sWB, 26, 640 * 1920 * 2)
    lab("K1_COMMON")
    srd(sX, 24, 2048 * 1280)
    srd(sWS, 38, WS_USED)
    t0, t1, t2, t3, t4 = vT, vT + 1, vT + 2, vT + 3, vT + 4
    e(f"s_mov_b32 s{sXSO}, 0")
    e(f"s_mov_b32 s{sWSO}, 0")
    e(f"s_cmp_lt_u32 s{sW}, 4")
    e("s_cbranch_scc0 K1_PFSETUP")
    cm("x dma voffsets (waves 0-3: rows 64w..64w+63)")
    e(f"v_lshrrev_b32 v{t0}, 3, v{vL}")
    e(f"v_and_b32 v{t1}, 7, v{vL}")
    e(f"v_bfe_u32 v{t3}, v{t0}, 1, 2")
    e(f"v_xor_b32 v{t3}, v{t3}, v{t1}")
    e(f"v_lshlrev_b32 v{t3}, 4, v{t3}")
    e(f"v_xor_b32 v{t4}, 64, v{t3}")
    e(f"s_lshl_b32 s{sT0}, s{sW}, 6")
    e(f"s_add_i32 s{sT0}, s{sT0}, s{sR0}")
    e(f"s_movk_i32 s{sT1}, 1280")
    e(f"v_add_u32 v{t0}, s{sT0}, v{t0}")
    e(f"s_lshl_b32 s{sXD}, s{sW}, 13")
    for i in range(8):
        e(f"v_add_u32 v{t2}, {8*i}, v{t0}")
        e(f"v_med3_i32 v{t2}, v{t2}, 0, s{sMAXR}")
        e(f"v_mad_u32_u24 v{vXV+i}, v{t2}, s{sT1}, v{t4 if i&1 else t3}")
    for i in range(8):
        for q in piece_x(i): e(q)
    cm("W dma voffsets: piece p=3w+i ; region=w>>1 ; lin=(p%6)*1024+l*16")
    e(f"s_and_b32 s{sT0}, s{sW}, 1")
    e(f"s_mul_i32 s{sT0}, s{sT0}, 192")
    e(f"s_lshr_b32 s{sT2}, s{sW}, 1")
    e(f"s_mul_i32 s{sWD}, s{sT2}, {WREGB}")
    e(f"s_lshl_b32 s{sT3}, s{sT0}, 4")
    e(f"s_add_u32 s{sWD}, s{sWD}, s{sT3}")
    e(f"s_add_u32 s{sWD}, s{sWD}, {WBASE}")
    e(f"s_mul_i32 s{sT3}, s{sT2}, s{sOB}")
    e(f"s_add_u32 s{sCOLB}, s{sCOLB}, s{sT3}")
    e(f"s_lshr_b32 s{sT3}, 8, s{sT2}")
    e(f"s_cmp_eq_u32 s{sT2}, 0")
    e(f"s_cselect_b32 s{sWA}, s{sWA}, s{sWB}")
    e(f"s_cselect_b32 s{sWA+1}, s{sWA+1}, s{sWB+1}")
    e(f"s_lshl_b32 s{sWSTEP}, s{sPITCH}, 5")
    e(f"v_mov_b32 v{t4}, s{sJ}")
    for i in range(3):
        e(f"v_add_u32 v{t0}, s{sT0}, v{vL}")
        if i: e(f"v_add_u32 v{t0}, {64*i}, v{t0}")
        e(f"v_mul_u32_u24 v{t1}, 0xaab, v{t0}")
        e(f"v_lshrrev_b32 v{t1}, 15, v{t1}")
        e(f"v_mul_u32_u24 v{t2}, 12, v{t1}")
        e(f"v_sub_u32 v{t0}, v{t0}, v{t2}")
        e(f"v_cmp_le_u32 vcc, s{sT3}, v{t0}")
        e(f"v_mul_lo_u32 v{t1}, v{t1}, s{sPITCH}")
        e(f"v_lshl_add_u32 v{t1}, v{t0}, 4, v{t1}")
        e(f"v_cndmask_b32 v{t2}, 0, v{t4}, vcc")
        e(f"v_add3_u32 v{vWV+i}, v{t1}, v{t2}, s{sCOLB}")
    for r in range(2):
        for i in range(3):
            for q in piece_w(i): e(q)
    for i in range(8):
        for q in piece_x(i): e(q)
    for r in range(2):
        for i in range(3):
            for q in piece_w(i): e(q)
    e("s_branch K1_SETUP2")
    lab("K1_PFSETUP")
    pf_setup()
    for i in range(OPT["pfd"]):
        for q in piece_pf(): e(q)
    lab("K1_SETUP2")
    e(f"s_mov_b64 s[{sFULL}:{sFULL+1}], exec")
    cm("LDS read addresses")
    e(f"v_bfe_u32 v{t0}, v{vM}, 1, 3")
    e(f"v_xor_b32 v{t0}, v{t0}, v{vH}")
    e(f"s_lshl_b32 s{sT0}, s{sROT}, 1")
    e(f"v_xor_b32 v{t0}, s{sT0}, v{t0}")
    e(f"v_lshlrev_b32 v{t0}, 4, v{t0}")
    e(f"v_lshl_add_u32 v{t0}, v{vM}, 7, v{t0}")
    e(f"s_lshl_b32 s{sT0}, s{sW}, 12")
    e(f"v_add_u32 v{vXB0}, s{sT0}, v{t0}")
    e(f"v_add_u32 v{vXB}, s{sT0}, v{t0}")
    e(f"v_bfe_u32 v{t0}, v{vL}, 4, 1")
    e(f"v_mul_u32_u24 v{t0}, {WREGB}, v{t0}")
    e(f"v_bfe_u32 v{t1}, v{vL}, 2, 2")
    e(f"v_lshl_add_u32 v{t1}, v{vH}, 3, v{t1}")
    e(f"v_mul_u32_u24 v{t1}, 192, v{t1}")
    e(f"v_add_u32 v{t0}, v{t0}, v{t1}")
    e(f"v_and_b32 v{t1}, 1, v{vL}")
    e(f"v_lshl_add_u32 v{t0}, v{t1}, 4, v{t0}")
    e(f"v_bfe_u32 v{t1}, v{vL}, 1, 1")
    e(f"v_lshl_add_u32 v{t0}, v{t1}, 3, v{t0}")
    e(f"s_mul_i32 s{sT0}, s{sWN}, 96")
    e(f"s_add_u32 s{sT0}, s{sT0}, {WBASE}")
    e(f"s_mul_i32 s{sT1}, s{sROT}, 3072")
    e(f"s_add_u32 s{sT2}, s{sT0}, s{sT1}")
    e(f"v_add_u32 v{vWB0}, s{sT2}, v{t0}")
    e(f"v_add_u32 v{vWA0}, s{sT2}, v{t0}")
    e(f"s_sub_u32 s{sT2}, s{sT0}, s{sT1}")
    e(f"s_add_u32 s{sT2}, s{sT2}, 3072")
    e(f"v_add_u32 v{vWB1}, s{sT2}, v{t0}")
    e(f"s_mov_b32 s{sXR}, 0")
    e(f"s_mov_b32 s{sWR}, 0")
    e(f"s_mov_b32 s{sONE}, 0x3f803f80")
    for r in range(vS1, vCS + 3):
        e(f"v_mov_b32 v{r}, 0")
    for r in range(ACC, ACC + 96):
        e(f"v_mov_b32 v{r}, 0")

    def reads(F, wa, sp):
        if OPT["nolds"] == 1: return []
        g = []
        def xr(mbi):
            cst = 32 * sp + 4096 * mbi
            if cst == 0: return [f"ds_read_b128 {vr(F+4*mbi,4)}, v{vXB}"]
            return [f"v_xor_b32 v{vTA}, {cst}, v{vXB}", f"ds_read_b128 {vr(F+4*mbi,4)}, v{vTA}"]
        def wr(t, hh): return [f"ds_read_b64_tr_b16 {vr(F+8+4*t+2*hh,2)}, v{wa} offset:{32*t+768*hh}"]
        g = [xr(0), wr(0, 0), wr(0, 1), xr(1), wr(1, 0), wr(1, 1), wr(2, 0), wr(2, 1)]
        return g
    def adv_w():
        e(f"v_add_u32 v{vWA1}, s{sWR}, v{vWB1}")
        e(f"s_add_u32 s{sWR}, s{sWR}, {WSLOT}")
        e(f"s_cmp_ge_u32 s{sWR}, {5*WSLOT}")
        e(f"s_cselect_b32 s{sWR}, 0, s{sWR}")
        e(f"v_add_u32 v{vWA0}, s{sWR}, v{vWB0}")
    def adv_x():
        e(f"s_add_u32 s{sXR}, s{sXR}, {XSLOT}")
        e(f"s_cmp_ge_u32 s{sXR}, {3*XSLOT}")
        e(f"s_cselect_b32 s{sXR}, 0, s{sXR}")
        e(f"v_add_u32 v{vXB}, s{sXR}, v{vXB0}")
    def kstep(F, cs, rd, pieces, post=()):
        st = []
        if OPT["stats"]:
            for j in range(4):
                st.append(f"v_dot2c_f32_bf16 v{vS1+(j&1)}, s{sONE}, v{F+j}")
                st.append(f"v_dot2c_f32_bf16 v{vS2+(j&1)}, v{F+j}, v{F+j}")
            if cs:
                for j in range(4):
                    for t in range(3):
                        st.append(f"v_dot2c_f32_bf16 v{vCS+t}, s{sONE}, v{F+8+4*t+j}")
        RPG = OPT["rpg"]
        n = len(st); k = 0; idx = 0; ri = 0; pi = 0
        e("s_waitcnt lgkmcnt(0)")
        for t in range(3):
            for mbi in range(2):
                a = ACC + (mbi * 3 + t) * 16
                if not OPT["nomfma"]: e(f"v_mfma_f32_32x32x16_bf16 {vr(a,16)}, {vr(F+8+4*t,4)}, {vr(F+4*mbi,4)}, {vr(a,16)}")
                for _ in range(RPG):
                    if ri < len(rd):
                        for q in rd[ri]: e(q)
                        ri += 1
                if ri == len(rd):
                    for q in post: e(q)
                    post = ()
                idx += 1
                lo = 6 - len(pieces)
                if idx > lo and pi < len(pieces):
                    for q in pieces[pi]: e(q)
                    pi += 1
                while k < n * idx // 6:
                    e(st[k]); k += 1

    e("s_waitcnt vmcnt(17)")
    e("s_barrier")
    stamp(1)
    for g in reads(FA, vWA0, 0):
        for q in g: e(q)
    e(f"s_mov_b32 s{sI}, 0")
    def advx_l():
        return [f"s_add_u32 s{sXR}, s{sXR}, {XSLOT}", f"s_cmp_ge_u32 s{sXR}, {3*XSLOT}",
                f"s_cselect_b32 s{sXR}, 0, s{sXR}", f"v_add_u32 v{vXB}, s{sXR}, v{vXB0}"]
    def body(mode, tag, cnt):
        dma = mode == "dma"
        L.append(".p2align 6")
        lab(f"K1_LOOP{tag}")
        cm("---- even step")
        adv_w()
        if mode != "pf": e("s_waitcnt vmcnt(14)")
        e("s_barrier")
        kstep(FA, True, reads(FB, vWA1, 1), [piece_x(i) for i in range(4)] if dma else [piece_pf()] if mode == "pf" else [])
        kstep(FB, False, reads(FA, vWA0, 2), [piece_w(i) for i in range(3)] if dma else [])
        cm("---- odd step")
        adv_w()
        if mode != "pf": e("s_waitcnt vmcnt(10)" if dma else "s_waitcnt vmcnt(0)")
        e("s_barrier")
        kstep(FA, True, reads(FB, vWA1, 3), [piece_x(i) for i in range(4, 8)] if dma else [], advx_l())
        kstep(FB, False, reads(FA, vWA0, 0), [piece_w(i) for i in range(3)] if dma else [])
        e(f"s_add_u32 s{sI}, s{sI}, 1")
        e(f"s_cmp_lt_u32 s{sI}, {cnt}")
        e(f"s_cbranch_scc1 K1_LOOP{tag}")
    e(f"s_cmp_lt_u32 s{sW}, 4")
    e("s_cbranch_scc0 K1_LOOPP")
    body("tail" if OPT["nodma"] else "dma", "A", 8)
    e("s_branch K1_LOOPB")
    body("pf", "P", 8)
    body("tail", "B", 10)

    cm("row stats")
    stamp(2)
    a, b, c_, d = vT, vT + 1, vT + 2, vT + 3
    e("s_nop 3")
    e(f"v_add_f32 v{a}, v{vS1}, v{vS1+1}")
    e(f"v_add_f32 v{c_}, v{vS2}, v{vS2+1}")
    e(f"v_mov_b32 v{b}, v{a}")
    e(f"v_mov_b32 v{d}, v{c_}")
    e("s_nop 1")
    e(f"v_permlane32_swap_b32 v{a}, v{b}")
    e(f"v_permlane32_swap_b32 v{c_}, v{d}")
    e("s_nop 1")
    e(f"v_add_f32 v{a}, v{a}, v{b}")
    e(f"v_add_f32 v{c_}, v{c_}, v{d}")
    e(f"v_mul_f32 v{a}, {f32(1.0/640)}, v{a}")
    e(f"v_mul_f32 v{c_}, {f32(1.0/640)}, v{c_}")
    e(f"v_fma_f32 v{c_}, -v{a}, v{a}, v{c_}")
    e(f"v_max_f32 v{c_}, 0, v{c_}")
    e(f"v_cvt_pk_bf16_f32 v{a}, v{a}, v{a}")
    e(f"v_cvt_pk_bf16_f32 v{c_}, v{c_}, v{c_}")
    e(f"v_and_b32 v{c_}, 0xffff0000, v{c_}")
    e(f"v_add_f32 v{c_}, {f32(1e-5)}, v{c_}")
    e(f"v_cvt_pk_bf16_f32 v{c_}, v{c_}, v{c_}")
    e(f"v_and_b32 v{c_}, 0xffff0000, v{c_}")
    e(f"v_sqrt_f32 v{c_}, v{c_}")
    e("s_nop 0")
    e(f"v_cvt_pk_bf16_f32 v{c_}, v{c_}, v{c_}")
    e(f"v_and_b32 v{b}, 0xffff0000, v{c_}")
    e(f"s_lshl_b32 s{sT0}, s{sW}, 8")
    e(f"s_add_u32 s{sT0}, s{sT0}, {EX}")
    e(f"v_lshl_add_u32 v{d}, v{vM}, 3, s{sT0}")
    e(f"ds_write_b64 v{d}, {vr(a,2)}")
    e(f"s_mul_i32 s{sT0}, s{sW}, 768")
    e(f"s_add_u32 s{sT0}, s{sT0}, {EXC}")
    e(f"v_lshl_add_u32 v{c_}, v{vL}, 2, s{sT0}")
    for t in range(3):
        e(f"ds_write_b32 v{c_}, v{vCS+t} offset:{256*t}")
    e("s_waitcnt lgkmcnt(0)")
    e("s_barrier")
    vST0, vST1 = vT + 4, vT + 6
    vPC = vT + 8
    e(f"v_xor_b32 v{a}, 256, v{d}")
    e(f"ds_read_b64 {vr(vST0,2)}, v{d}")
    e(f"ds_read_b64 {vr(vST1,2)}, v{a}")
    e(f"s_xor_b32 s{sT1}, s{sW}, 2")
    e(f"s_mul_i32 s{sT0}, s{sT1}, 768")
    e(f"s_add_u32 s{sT0}, s{sT0}, {EXC}")
    e(f"v_lshl_add_u32 v{c_}, v{vL}, 2, s{sT0}")
    for t in range(3):
        e(f"ds_read_b32 v{vPC+t}, v{c_} offset:{256*t}")
    for r in (FA + 2, FA + 3, FA + 6, FA + 7, FA + 10, FA + 11, FA + 14, FA + 15, FA + 18, FA + 19):
        e(f"v_mov_b32 v{r}, 0")
    e(f"s_mov_b32 s{sT1}, 0xffff")
    e("s_waitcnt lgkmcnt(0)")
    e(f"v_mov_b32 v{FA}, v{vST0}")
    e(f"v_and_b32 v{FA+1}, 0xffff, v{vST0}")
    e(f"v_mov_b32 v{FA+4}, v{vST1}")
    e(f"v_and_b32 v{FA+5}, 0xffff, v{vST1}")
    for t in range(3):
        cc, p, q, hf = vT + 12, vT + 13, vT + 14, vT + 15
        e(f"v_add_f32 v{cc}, v{vCS+t}, v{vPC+t}")
        e(f"v_sub_f32 v{cc}, 0, v{cc}")
        e(f"v_cvt_pk_bf16_f32 v{p}, v{cc}, v{cc}")
        e(f"v_and_b32 v{hf}, 0xffff0000, v{p}")
        e(f"v_sub_f32 v{cc}, v{cc}, v{hf}")
        e(f"v_cvt_pk_bf16_f32 v{q}, v{cc}, v{cc}")
        e(f"v_and_b32 v{hf}, 0xffff0000, v{q}")
        e(f"v_sub_f32 v{cc}, v{cc}, v{hf}")
        e(f"v_bfi_b32 v{FA+8+4*t}, s{sT1}, v{p}, v{q}")
        e(f"v_cvt_pk_bf16_f32 v{FA+9+4*t}, v{cc}, 0")
    e("s_nop 1")
    for t in range(3):
        for mbi in range(2):
            a_ = ACC + (mbi * 3 + t) * 16
            e(f"v_mfma_f32_32x32x16_bf16 {vr(a_,16)}, {vr(FA+8+4*t,4)}, {vr(FA+4*mbi,4)}, {vr(a_,16)}")
    vR = vT + 12
    e(f"v_rcp_f32 v{vR}, v{vST0+1}")
    e(f"v_rcp_f32 v{vR+1}, v{vST1+1}")
    stamp(3)
    e(f"s_cmp_eq_u32 s{sTYPE}, 0")
    e("s_cbranch_scc0 K1_EPI_ATT")

    cm("ff epilogue")
    K0 = -2.0 * 0.7978845608028654 * 1.4426950408889634
    K1c = K0 * 0.044715
    vC0, vC1, vI2 = vT + 14, vT + 16, vT + 18
    vSA = vT + 20
    for mbi in range(2):
        st = (vST0, vST1)[mbi]
        e(f"v_mul_f32 v{vC0+mbi}, {f32(K0)}, v{vR+mbi}")
        e(f"v_mul_f32 v{vC1+mbi}, v{vR+mbi}, v{vR+mbi}")
        e(f"v_mul_f32 v{vC1+mbi}, v{vC1+mbi}, v{vR+mbi}")
        e(f"v_mul_f32 v{vC1+mbi}, {f32(K1c)}, v{vC1+mbi}")
        e(f"v_mul_f32 v{vI2+mbi}, v{st+1}, v{st+1}")
    e(f"v_and_b32 v{a}, 15, v{vM}")
    e(f"v_lshlrev_b32 v{a}, 4, v{a}")
    e(f"v_lshl_add_u32 v{a}, v{vH}, 8, v{a}")
    e(f"v_lshrrev_b32 v{b}, 4, v{vM}")
    e(f"v_lshl_add_u32 v{a}, v{b}, 10, v{a}")
    e(f"s_lshl_b32 s{sT0}, s{sWN}, 11")
    e(f"v_add_u32 v{vSA}, s{sT0}, v{a}")
    e(f"v_xor_b32 v{vSA+1}, 2048, v{vSA}")
    e(f"s_lshr_b32 s{sT0}, s{sR0}, 6")
    e(f"s_add_u32 s{sT0}, s{sT0}, s{sWM}")
    e(f"s_mul_i32 s{sT0}, s{sT0}, 74")
    e(f"s_mul_i32 s{sT1}, s{sC}, 3")
    e(f"s_add_u32 s{sT0}, s{sT0}, s{sT1}")
    e(f"s_add_u32 s{sT0}, s{sT0}, 20")
    e(f"s_lshl_b32 s{sT0}, s{sT0}, 12")
    e(f"s_mul_i32 s{sT1}, s{sWN}, 4608")
    e(f"s_add_u32 s{sST}, s{sT0}, s{sT1}")
    e(f"s_add_u32 s{sST+2}, s{sST}, 4096")
    e(f"s_mul_i32 s{sT1}, s{sWN}, 7680")
    e(f"s_add_u32 s{sST+1}, s{sT0}, s{sT1}")
    e(f"s_add_u32 s{sST+1}, s{sST+1}, 512")
    e("s_nop 7")
    tb = vT + 24
    for mbi in range(2):
        for t in range(3):
            A = ACC + (mbi * 3 + t) * 16
            z = tb; dd = tb + 8; o = tb + 16 + 4 * ((mbi * 3 + t) & 1)
            for j in range(8):
                e(f"v_mul_f32 v{z+j}, v{A+j}, v{A+j}")
            for j in range(8):
                e(f"v_fma_f32 v{z+j}, v{z+j}, v{vC1+mbi}, v{vC0+mbi}")
            for j in range(8):
                e(f"v_mul_f32 v{z+j}, v{z+j}, v{A+j}")
            for j in range(8):
                e(f"v_exp_f32 v{z+j}, v{z+j}")
            for j in range(8):
                e(f"v_mul_f32 v{dd+j}, v{A+j}, v{A+8+j}")
            for j in range(8):
                e(f"v_fma_f32 v{z+j}, v{z+j}, v{vI2+mbi}, v{vI2+mbi}")
            for j in range(8):
                e(f"v_rcp_f32 v{z+j}, v{z+j}")
            e("s_nop 0")
            for j in range(8):
                e(f"v_mul_f32 v{dd+j}, v{dd+j}, v{z+j}")
            for j in range(4):
                e(f"v_cvt_pk_bf16_f32 v{o+j}, v{dd+2*j}, v{dd+2*j+1}")
            e(f"buffer_store_dwordx4 {vr(o,4)}, v{vSA+mbi}, {sr(sWS,4)}, s{sST+t} offen{WT}")
    if OPT["prof"]: e("s_waitcnt vmcnt(0)")
    stamp_store(0, 5, sWS, sW, 24)
    e("s_endpgm")

    lab("K1_EPI_ATT")
    cm("write q,k,v (bf16) to LDS")
    vQA = vT + 14
    e(f"s_lshl_b32 s{sT0}, s{sW}, 5")
    e(f"v_add_u32 v{a}, s{sT0}, v{vM}")
    e(f"v_xor_b32 v{b}, 32, v{a}")
    e(f"s_mul_i32 s{sT1}, s{sWN}, 96")
    e(f"v_lshlrev_b32 v{c_}, 4, v{vH}")
    e(f"v_add_u32 v{c_}, s{sT1}, v{c_}")
    e(f"s_movk_i32 s{sT2}, {QP}")
    e(f"v_mad_u32_u24 v{vQA}, v{a}, s{sT2}, v{c_}")
    e(f"v_mad_u32_u24 v{vQA+1}, v{b}, s{sT2}, v{c_}")
    e("s_nop 7")
    tb = vT + 24
    for mbi in range(2):
        for t in range(3):
            A = ACC + (mbi * 3 + t) * 16
            o = tb + 8 * ((mbi * 3 + t) & 1)
            for j in range(16):
                e(f"v_mul_f32 v{A+j}, v{A+j}, v{vR+mbi}")
            for j in range(8):
                e(f"v_cvt_pk_bf16_f32 v{o+j}, v{A+2*j}, v{A+2*j+1}")
            for R in range(2):
                for hh in range(2):
                    e(f"ds_write_b64 v{vQA+mbi}, {vr(o+4*R+2*hh,2)} offset:{192*R + 32*t + 8*hh}")
    cm("attention phase setup")
    vROW, vGR, vQR = vT, vT + 1, vT + 2
    vKR = vT + 4
    vMSK = vT + 8
    vRP = vT + 12
    vD0 = vT + 13
    vD2 = vT + 14
    e(f"v_add_u32 v{vROW}, s{sT0}, v{vM}")
    e(f"v_add_u32 v{vGR}, s{sR0}, v{vROW}")
    e(f"v_mul_u32_u24 v{vQR}, {QP}, v{vROW}")
    e(f"v_lshlrev_b32 v{vT+3}, 3, v{vH}")
    for w_ in range(4):
        e(f"v_add_u32 v{vT+15}, {2*w_}, v{vT+3}")
        e(f"v_sub_u32 v{vKR+w_}, v{vROW}, v{vT+15}")
        e(f"v_max_i32 v{vKR+w_}, 0, v{vKR+w_}")
        e(f"v_mul_u32_u24 v{vKR+w_}, {QP}, v{vKR+w_}")
        e(f"v_cmp_lt_i32 vcc, v{vGR}, v{vT+15}")
        e(f"v_mov_b32 v{vT+16}, {f32(-1e9)}")
        e("s_nop 0")
        e(f"v_cndmask_b32 v{vMSK+w_}, 0, v{vT+16}, vcc")
    e(f"v_lshrrev_b32 v{vT+15}, 6, v{vGR}")
    e(f"v_mul_u32_u24 v{vT+15}, 296, v{vT+15}")
    e(f"v_bfe_u32 v{vT+16}, v{vGR}, 4, 2")
    e(f"v_add_u32 v{vT+15}, v{vT+15}, v{vT+16}")
    e(f"v_lshlrev_b32 v{vT+15}, 10, v{vT+15}")
    e(f"v_and_b32 v{vT+16}, 15, v{vGR}")
    e(f"v_lshl_add_u32 v{vRP}, v{vT+16}, 4, v{vT+15}")
    e(f"v_mul_u32_u24 v{vD0}, 12, v{vH}")
    e(f"v_lshl_add_u32 v{vD2}, v{vH}, 1, 8")
    e(f"v_cmp_le_u32 vcc, 16, v{vROW}")
    e(f"v_cmp_gt_i32 s[{sT2}:{sT3}], 0x800, v{vGR}" if False else f"s_movk_i32 s{sT1}, 0x800")
    e(f"v_cmp_gt_i32 s[{sT2}:{sT3}], s{sT1}, v{vGR}")
    e(f"s_and_b64 s[{sEXM}:{sEXM+1}], vcc, s[{sT2}:{sT3}]")
    e(f"s_mov_b32 s{sI}, 0")
    e(f"s_cmp_eq_u32 s{sC}, 10")
    e(f"s_cselect_b32 s{sMT}, 2, 3")
    e(f"s_mul_i32 s{sST}, s{sC}, 60")
    e(f"s_mov_b32 s{sST+1}, 0x05040100")
    e(f"s_mov_b32 s{sST+2}, 0x07060302")
    e("s_waitcnt lgkmcnt(0)")
    e("s_barrier")
    stamp(4)
    Q, KK, VV, O = 44, 56, 96, 136
    LG = 160; TP = 168; PP = 176
    lab("K1_HEAD")
    for j in range(5):
        e(f"ds_read_b64 {vr(Q+2*j,2)}, v{vQR} offset:{8*j}")
    for w_ in range(4):
        for j in range(5):
            e(f"ds_read_b64 {vr(KK+10*w_+2*j,2)}, v{vKR+w_} offset:{128+8*j}")
    for w_ in range(4):
        for j in range(5):
            e(f"ds_read_b64 {vr(VV+10*w_+2*j,2)}, v{vKR+w_} offset:{256+8*j}")
    for w_ in range(4):
        e(f"v_mov_b32 v{LG+w_}, 0")
    for r in range(20):
        e(f"v_mov_b32 v{O+r}, 0")
    e("s_waitcnt lgkmcnt(15)")
    for j in range(10):
        for w_ in range(4):
            e(f"v_dot2c_f32_bf16 v{LG+w_}, v{Q+j}, v{KK+10*w_+j}")
    e("s_nop 2")
    SC = 20 ** -0.5
    e(f"v_cvt_pk_bf16_f32 v{TP}, v{LG}, v{LG+1}")
    e(f"v_cvt_pk_bf16_f32 v{TP+1}, v{LG+2}, v{LG+3}")
    for w_ in range(4):
        if w_ & 1:
            e(f"v_and_b32 v{LG+w_}, 0xffff0000, v{TP+(w_>>1)}")
        else:
            e(f"v_lshlrev_b32 v{LG+w_}, 16, v{TP+(w_>>1)}")
    for w_ in range(4):
        e(f"v_mul_f32 v{LG+w_}, {f32(SC)}, v{LG+w_}")
    e(f"v_cvt_pk_bf16_f32 v{TP}, v{LG}, v{LG+1}")
    e(f"v_cvt_pk_bf16_f32 v{TP+1}, v{LG+2}, v{LG+3}")
    for w_ in range(4):
        if w_ & 1:
            e(f"v_and_b32 v{LG+w_}, 0xffff0000, v{TP+(w_>>1)}")
        else:
            e(f"v_lshlrev_b32 v{LG+w_}, 16, v{TP+(w_>>1)}")
    for w_ in range(4):
        e(f"v_cmp_gt_f32 vcc, 0, v{vMSK+w_}")
        e("s_nop 1")
        e(f"v_cndmask_b32 v{LG+w_}, v{LG+w_}, v{vMSK+w_}, vcc")
    e(f"v_max_f32 v{TP}, v{LG}, v{LG+1}")
    e(f"v_max3_f32 v{TP}, v{TP}, v{LG+2}, v{LG+3}")
    e(f"v_mov_b32 v{TP+1}, v{TP}")
    e("s_nop 1")
    e(f"v_permlane32_swap_b32 v{TP}, v{TP+1}")
    e("s_nop 1")
    e(f"v_max_f32 v{TP}, v{TP}, v{TP+1}")
    for w_ in range(4):
        e(f"v_sub_f32 v{LG+w_}, v{LG+w_}, v{TP}")
    for w_ in range(4):
        e(f"v_mul_f32 v{LG+w_}, {f32(1.4426950408889634)}, v{LG+w_}")
    for w_ in range(4):
        e(f"v_exp_f32 v{LG+w_}, v{LG+w_}")
    e("s_nop 0")
    e(f"v_add_f32 v{TP}, v{LG}, v{LG+1}")
    e(f"v_add_f32 v{TP+1}, v{LG+2}, v{LG+3}")
    e(f"v_add_f32 v{TP}, v{TP}, v{TP+1}")
    e(f"v_mov_b32 v{TP+1}, v{TP}")
    e("s_nop 1")
    e(f"v_permlane32_swap_b32 v{TP}, v{TP+1}")
    e("s_nop 1")
    e(f"v_add_f32 v{TP}, v{TP}, v{TP+1}")
    e(f"v_rcp_f32 v{TP}, v{TP}")
    e("s_nop 0")
    for w_ in range(4):
        e(f"v_mul_f32 v{LG+w_}, v{LG+w_}, v{TP}")
    e(f"v_cvt_pk_bf16_f32 v{PP}, v{LG}, v{LG+1}")
    e(f"v_cvt_pk_bf16_f32 v{PP+1}, v{LG+2}, v{LG+3}")
    e("s_waitcnt lgkmcnt(0)")
    for j in range(10):
        for wp in range(2):
            v0_, v1_ = VV + 20 * wp + j, VV + 20 * wp + 10 + j
            tl, th = TP + 2 * wp, TP + 2 * wp + 1
            e(f"v_perm_b32 v{tl}, v{v1_}, v{v0_}, s{sST+1}")
            e(f"v_perm_b32 v{th}, v{v1_}, v{v0_}, s{sST+2}")
        for wp in range(2):
            tl, th = TP + 2 * wp, TP + 2 * wp + 1
            e(f"v_dot2c_f32_bf16 v{O+2*j}, v{PP+wp}, v{tl}")
            e(f"v_dot2c_f32_bf16 v{O+2*j+1}, v{PP+wp}, v{th}")
    e("s_nop 3")
    bl = [12, 13, 14, 15, 16, 17, 18, 19, 10, 11]
    for j in range(10):
        e(f"v_permlane32_swap_b32 v{O+j}, v{O+bl[j]}")
    e("s_nop 1")
    for j in range(10):
        e(f"v_add_f32 v{O+j}, v{O+j}, v{O+bl[j]}")
    OUT = 180
    for j in range(5):
        e(f"v_cvt_pk_bf16_f32 v{OUT+j}, v{O+2*j}, v{O+2*j+1}")
    AD = 188
    for s_ in range(3):
        if s_ < 2:
            e(f"v_add_u32 v{TP}, s{sST}, v{vD0}")
            if s_ == 1:
                e(f"v_add_u32 v{TP}, 4, v{TP}")
        else:
            e(f"v_add_u32 v{TP}, s{sST}, v{vD2}")
        e(f"v_lshrrev_b32 v{TP+1}, 5, v{TP}")
        e(f"v_lshl_add_u32 v{AD+s_}, v{TP+1}, 12, v{vRP}")
        e(f"v_bfe_u32 v{TP+1}, v{TP}, 3, 2")
        e(f"v_lshl_add_u32 v{AD+s_}, v{TP+1}, 8, v{AD+s_}")
        e(f"v_and_b32 v{TP+1}, 7, v{TP}")
        e(f"v_lshl_add_u32 v{AD+s_}, v{TP+1}, 1, v{AD+s_}")
    e(f"s_mov_b64 exec, s[{sEXM}:{sEXM+1}]")
    e("s_cbranch_execz K1_NOST")
    e(f"buffer_store_dwordx2 {vr(OUT,2)}, v{AD}, {sr(sWS,4)}, 0 offen{WT}")
    e(f"buffer_store_dwordx2 {vr(OUT+2,2)}, v{AD+1}, {sr(sWS,4)}, 0 offen{WT}")
    e(f"buffer_store_dword v{OUT+4}, v{AD+2}, {sr(sWS,4)}, 0 offen{WT}")
    lab("K1_NOST")
    e(f"s_mov_b64 exec, s[{sFULL}:{sFULL+1}]")
    e(f"v_add_u32 v{vQR}, 40, v{vQR}")
    for w_ in range(4):
        e(f"v_add_u32 v{vKR+w_}, 40, v{vKR+w_}")
    e(f"s_add_u32 s{sST}, s{sST}, 20")
    e(f"s_add_u32 s{sI}, s{sI}, 1")
    e(f"s_cmp_lt_u32 s{sI}, s{sMT}")
    e("s_cbranch_scc1 K1_HEAD")
    if OPT["prof"]: e("s_waitcnt vmcnt(0)")
    stamp_store(0, 6, sWS, sW, 24)
    e("s_endpgm")

    lab("K1_SPARE")
    sSP = sC
    e(f"s_mov_b32 s{sSP}, s{sT1}")
    e("s_waitcnt lgkmcnt(0)")
    srd(sWA, 28, 640 * 1280)
    srd(sWB, 36, 1728 * 1280)
    srd(sWS, 38, WS_USED)
    e(f"s_cmp_lt_u32 s{sW}, 4")
    e("s_cbranch_scc1 K1_SP_NOPF")
    pf_setup()
    for i in range(8):
        for q in piece_pf(): e(q)
    lab("K1_SP_NOPF")
    vDV = 4
    vRA = 10
    vKY = 11
    vSO = 12
    e(f"s_mul_i32 s{sT0}, s{sW}, 320")
    e(f"s_mov_b32 s{sT1}, 52429")
    e(f"s_movk_i32 s{sT2}, 1280")
    for q in range(5):
        e(f"v_add_u32 v{t0}, s{sT0}, v{vL}")
        if q: e(f"v_add_u32 v{t0}, {64*q}, v{t0}")
        e(f"v_mul_lo_u32 v{t1}, v{t0}, s{sT1}")
        e(f"v_lshrrev_b32 v{t1}, 22, v{t1}")
        e(f"v_mul_u32_u24 v{t2}, 80, v{t1}")
        e(f"v_sub_u32 v{t0}, v{t0}, v{t2}")
        e(f"v_and_b32 v{t2}, 3, v{t1}")
        e(f"v_bfe_u32 v{t3}, v{t1}, 3, 1")
        e(f"v_lshl_add_u32 v{t2}, v{t3}, 2, v{t2}")
        e(f"v_lshlrev_b32 v{t2}, 1, v{t2}")
        e(f"v_xor_b32 v{t0}, v{t0}, v{t2}")
        e(f"v_mul_lo_u32 v{t1}, v{t1}, s{sT2}")
        e(f"v_lshl_add_u32 v{vDV+q}, v{t0}, 4, v{t1}")
    e(f"v_lshrrev_b32 v{t0}, 4, v{vL}")
    e(f"v_bfe_u32 v{t1}, v{vL}, 2, 2")
    e(f"v_lshl_add_u32 v{t2}, v{t0}, 3, v{t1}")
    e(f"v_mul_lo_u32 v{t2}, v{t2}, s{sT2}")
    e(f"v_and_b32 v{t3}, 3, v{vL}")
    e(f"v_lshl_add_u32 v{vRA}, v{t3}, 3, v{t2}")
    e(f"v_and_b32 v{t0}, 1, v{t0}")
    e(f"v_lshl_add_u32 v{t0}, v{t0}, 2, v{t1}")
    e(f"v_lshlrev_b32 v{vKY}, 5, v{t0}")
    e(f"v_lshlrev_b32 v{vSO}, 4, v{vL}")
    e(f"s_mov_b32 s{sI}, 0")
    sKB = sR0
    lab("K1_SP_ROUND")
    for jj in range(3):
        e(f"s_mul_i32 s{sKB}, s{sI}, 39")
        e(f"s_add_u32 s{sKB}, s{sKB}, s{sSP}")
        e(f"s_add_u32 s{sKB}, s{sKB}, {13*jj}")
        e(f"s_cmp_lt_u32 s{sKB}, 74")
        e(f"s_cbranch_scc0 K1_SP_NOLD{jj}")
        e(f"s_mul_i32 s{sXD}, s{sW}, 5120")
        e(f"s_add_u32 s{sXD}, s{sXD}, {40960*jj}")
        e(f"s_cmp_lt_u32 s{sKB}, 20")
        e(f"s_cbranch_scc0 K1_SP_DN{jj}")
        e(f"s_mul_i32 s{sXSO}, s{sKB}, 40960")
        for q in range(5):
            e(f"s_add_u32 m0, s{sXD}, {1024*q}")
            e("s_nop 0")
            e(f"buffer_load_dwordx4 v{vDV+q}, {sr(sWA,4)}, s{sXSO} offen lds")
        e(f"s_branch K1_SP_NOLD{jj}")
        lab(f"K1_SP_DN{jj}")
        e(f"s_sub_u32 s{sXSO}, s{sKB}, 20")
        e(f"s_mul_i32 s{sXSO}, s{sXSO}, 40960")
        for q in range(5):
            e(f"s_add_u32 m0, s{sXD}, {1024*q}")
            e("s_nop 0")
            e(f"buffer_load_dwordx4 v{vDV+q}, {sr(sWB,4)}, s{sXSO} offen lds")
        lab(f"K1_SP_NOLD{jj}")
    e("s_waitcnt vmcnt(0)")
    e("s_barrier")
    for jj in range(3):
        e(f"s_mul_i32 s{sKB}, s{sI}, 39")
        e(f"s_add_u32 s{sKB}, s{sKB}, s{sSP}")
        e(f"s_add_u32 s{sKB}, s{sKB}, {13*jj}")
        e(f"s_cmp_lt_u32 s{sKB}, 74")
        e(f"s_cbranch_scc0 K1_SP_NOST{jj}")
        e(f"s_mul_i32 s{sT0}, s{sW}, 160")
        for j in range(5):
            e(f"s_add_u32 s{sT1}, s{sT0}, {32*j}")
            e(f"v_xad_u32 v{vTA}, v{vKY}, s{sT1}, v{vRA}")
            e(f"ds_read_b64_tr_b16 {vr(24+4*j,2)}, v{vTA} offset:{40960*jj - (40960 if jj==2 else 0)}"
              if jj < 2 else f"v_add_u32 v{vTA}, 40960, v{vTA}")
            if jj == 2:
                e(f"ds_read_b64_tr_b16 {vr(24+4*j,2)}, v{vTA} offset:40960")
                e(f"ds_read_b64_tr_b16 {vr(26+4*j,2)}, v{vTA} offset:{40960+5120}")
            else:
                e(f"ds_read_b64_tr_b16 {vr(26+4*j,2)}, v{vTA} offset:{40960*jj+5120}")
        e(f"s_mul_i32 s{sT0}, s{sW}, 74")
        e(f"s_add_u32 s{sT0}, s{sT0}, s{sKB}")
        e(f"s_mul_i32 s{sT0}, s{sT0}, 5120")
        e(f"s_add_u32 s{sT0}, s{sT0}, {W2_OFF}")
        e(f"s_add_u32 s{sT1}, s{sT0}, 4096")
        e("s_waitcnt lgkmcnt(0)")
        for j in range(4):
            e(f"buffer_store_dwordx4 {vr(24+4*j,4)}, v{vSO}, {sr(sWS,4)}, s{sT0} offen offset:{1024*j}{WT}")
        e(f"buffer_store_dwordx4 {vr(40,4)}, v{vSO}, {sr(sWS,4)}, s{sT1} offen{WT}")
        e("s_nop 1")
        lab(f"K1_SP_NOST{jj}")
    e("s_waitcnt vmcnt(0)")
    e("s_barrier")
    e(f"s_add_u32 s{sI}, s{sI}, 1")
    e(f"s_cmp_lt_u32 s{sI}, 2")
    e("s_cbranch_scc1 K1_SP_ROUND")
    stamp_store(0, 2, sWS, sW, 24)
    lab("K1_END")
    e("s_endpgm")

K2_PITCH = 336
K2_LDS = 4 * 64 * K2_PITCH
def k2():
    P = OPT["k2_P"]
    sWS, sX, sO = 8, 12, 16
    sW, sMT, sNT = 40, 41, 42
    sA, sB = 43, 44
    sT0, sT1, sT2 = 46, 47, 48
    vL, vO1, vO2 = 1, 2, 3
    vXO = 4
    vT = 10
    XR = 20
    ACC = 32
    STG = 112
    L.append(".p2align 8")
    lab("k2_kernel")
    e("s_cmp_ge_u32 s2, 256")
    e("s_cbranch_scc1 K2_END")
    stamp(0)
    e("s_load_dwordx2 s[24:25], s[0:1], 0")
    e("s_load_dwordx2 s[26:27], s[0:1], 56")
    e("s_load_dwordx2 s[28:29], s[0:1], 72")
    e(f"v_lshrrev_b32 v{vT}, 6, v0")
    e(f"v_and_b32 v{vL}, 63, v0")
    e(f"v_readfirstlane_b32 s{sW}, v{vT}")
    e(f"v_lshlrev_b32 v{vO1}, 4, v{vL}")
    e(f"v_add_u32 v{vO2}, 4096, v{vO1}")
    e(f"s_and_b32 s{sT0}, s2, 7")
    e(f"s_lshr_b32 s{sT1}, s2, 3")
    e(f"s_and_b32 s{sMT}, s{sT0}, 3")
    e(f"s_lshl_b32 s{sMT}, s{sMT}, 3")
    e(f"s_and_b32 s{sT2}, s{sT1}, 7")
    e(f"s_add_u32 s{sMT}, s{sMT}, s{sT2}")
    e(f"s_lshr_b32 s{sNT}, s{sT0}, 2")
    e(f"s_lshl_b32 s{sNT}, s{sNT}, 2")
    e(f"s_lshr_b32 s{sT2}, s{sT1}, 3")
    e(f"s_add_u32 s{sNT}, s{sNT}, s{sT2}")
    e(f"s_mul_i32 s{sA}, s{sMT}, 74")
    e(f"s_add_u32 s{sA}, s{sA}, s{sW}")
    e(f"s_lshl_b32 s{sA}, s{sA}, 12")
    e(f"s_mul_i32 s{sB}, s{sNT}, 74")
    e(f"s_add_u32 s{sB}, s{sB}, s{sW}")
    e(f"s_mul_i32 s{sB}, s{sB}, 5120")
    e(f"s_add_u32 s{sB}, s{sB}, {W2_OFF}")
    e("s_waitcnt lgkmcnt(0)")
    srd(sWS, 28, WS_USED)
    srd(sX, 24, 2048 * 1280)
    srd(sO, 26, 2048 * 1280)
    def loads(st):
        R = STG + 36 * (st % P)
        for j in range(4):
            e(f"buffer_load_dwordx4 {vr(R+4*j,4)}, v{vO1}, {sr(sWS,4)}, s{sA} offen offset:{1024*j}")
        for j in range(4):
            e(f"buffer_load_dwordx4 {vr(R+16+4*j,4)}, v{vO1}, {sr(sWS,4)}, s{sB} offen offset:{1024*j}")
        e(f"buffer_load_dwordx4 {vr(R+32,4)}, v{vO2}, {sr(sWS,4)}, s{sB} offen")
        if st == 17:
            e(f"s_cmp_lt_u32 s{sW}, 2")
            e(f"s_cselect_b32 s{sT0}, {4*4096}, 0")
            e(f"s_cselect_b32 s{sT1}, {4*5120}, 0")
            e(f"s_add_u32 s{sA}, s{sA}, s{sT0}")
            e(f"s_add_u32 s{sB}, s{sB}, s{sT1}")
        else:
            e(f"s_add_u32 s{sA}, s{sA}, {4*4096}")
            e(f"s_add_u32 s{sB}, s{sB}, {4*5120}")
    for st in range(P):
        loads(st)
    e(f"s_mov_b32 s{sT0}, 0xcccd")
    e(f"s_lshl_b32 s{sT1}, s{sMT}, 6")
    e(f"s_mul_i32 s{sT1}, s{sT1}, 1280")
    e(f"s_mul_i32 s{sT2}, s{sNT}, 160")
    e(f"s_add_u32 s{sT1}, s{sT1}, s{sT2}")
    e(f"s_movk_i32 s{sT2}, 1280")
    vLA = 14
    for i in range(5):
        e(f"v_add_u32 v{vT}, {256*i}, v0")
        e(f"v_mul_lo_u32 v{vT+1}, v{vT}, s{sT0}")
        e(f"v_lshrrev_b32 v{vT+1}, 20, v{vT+1}")
        e(f"v_mul_u32_u24 v{vT+2}, 20, v{vT+1}")
        e(f"v_sub_u32 v{vT}, v{vT}, v{vT+2}")
        e(f"v_mul_u32_u24 v{vT+2}, {K2_PITCH}, v{vT+1}")
        e(f"v_lshl_add_u32 v{vLA+i}, v{vT}, 4, v{vT+2}")
        e(f"v_mul_lo_u32 v{vT+1}, v{vT+1}, s{sT2}")
        e(f"v_lshl_add_u32 v{vT+1}, v{vT}, 3, v{vT+1}")
        e(f"v_add_u32 v{vXO+i}, s{sT1}, v{vT+1}")
    for r in range(ACC, ACC + 80):
        e(f"v_mov_b32 v{r}, 0")
    NST = 19
    for st in range(NST):
        issued_after = min(NST, st + P) - (st + 1)
        if st == 18:
            e(f"s_cmp_lt_u32 s{sW}, 2")
            e("s_cbranch_scc0 K2_RED")
        extra = 5 if st >= NST - P + 1 else 0
        e(f"s_waitcnt vmcnt({9*issued_after + extra})")
        if st == 0: stamp(1)
        R = STG + 36 * (st % P)
        for j in range(5):
            for mb in range(4):
                a = ACC + (mb * 5 + j) * 4
                e(f"v_mfma_f32_16x16x32_bf16 {vr(a,4)}, {vr(R+16+4*j,4)}, {vr(R+4*mb,4)}, {vr(a,4)}")
        if st + P < NST:
            loads(st + P)
        if st + P == NST:
            for i in range(5):
                e(f"buffer_load_dwordx2 {vr(XR+2*i,2)}, v{vXO+i}, {sr(sX,4)}, 0 offen")
    lab("K2_RED")
    stamp(2)
    e(f"v_and_b32 v{vT}, 15, v{vL}")
    e(f"v_mul_u32_u24 v{vT}, {K2_PITCH}, v{vT}")
    e(f"v_lshrrev_b32 v{vT+1}, 4, v{vL}")
    e(f"v_lshl_add_u32 v{vT}, v{vT+1}, 4, v{vT}")
    e(f"s_mul_i32 s{sT0}, s{sW}, {64*K2_PITCH}")
    e(f"v_add_u32 v{vT}, s{sT0}, v{vT}")
    e("s_nop 7")
    for mb in range(4):
        for j in range(5):
            a = ACC + (mb * 5 + j) * 4
            e(f"ds_write_b128 v{vT}, {vr(a,4)} offset:{16*mb*K2_PITCH + 64*j}")
    e("s_waitcnt lgkmcnt(0)")
    e("s_barrier")
    RB = ACC
    for i in range(5):
        for w_ in range(4):
            off = w_ * 64 * K2_PITCH
            if off < 65536:
                e(f"ds_read_b128 {vr(RB+16*i+4*w_,4)}, v{vLA+i} offset:{off}")
            else:
                e(f"v_add_u32 v{vT}, {off}, v{vLA+i}")
                e(f"ds_read_b128 {vr(RB+16*i+4*w_,4)}, v{vT}")
    e("s_waitcnt vmcnt(0)")
    for i in range(5):
        e(f"s_waitcnt lgkmcnt({max(0, min(15, 4*(4-i)))})")
        b = RB + 16 * i
        for c in range(4):
            e(f"v_add_f32 v{b+c}, v{b+c}, v{b+4+c}")
            e(f"v_add_f32 v{b+8+c}, v{b+8+c}, v{b+12+c}")
        e(f"v_lshlrev_b32 v{b+4}, 16, v{XR+2*i}")
        e(f"v_and_b32 v{b+5}, 0xffff0000, v{XR+2*i}")
        e(f"v_lshlrev_b32 v{b+6}, 16, v{XR+2*i+1}")
        e(f"v_and_b32 v{b+7}, 0xffff0000, v{XR+2*i+1}")
        for c in range(4):
            e(f"v_add_f32 v{b+c}, v{b+c}, v{b+8+c}")
        for c in range(4):
            e(f"v_add_f32 v{b+c}, v{b+c}, v{b+4+c}")
        e(f"v_cvt_pk_bf16_f32 v{b+8}, v{b}, v{b+1}")
        e(f"v_cvt_pk_bf16_f32 v{b+9}, v{b+2}, v{b+3}")
        e(f"buffer_store_dwordx2 {vr(b+8,2)}, v{vXO+i}, {sr(sO,4)}, 0 offen")
    if OPT["prof"]: e("s_waitcnt vmcnt(0)")
    stamp_store(1, 4, sWS, sW, 8)
    lab("K2_END")
    e("s_endpgm")
    return STG + 36 * P

hdr = open("cdna_kernels/%s.s.ref" % NAME).read().split("; Override launch")[0]
out = [hdr.rstrip()]
out.append(f"; @launch kernel=k1_kernel grid=(256,1,1) block=(512,1,1) lds={K1_LDS}")
out.append(f"; @launch kernel=k2_kernel grid=(256,1,1) block=(256,1,1) lds={K2_LDS}")
out.append('.amdgcn_target "amdgcn-amd-amdhsa--gfx950"')
out.append(".text")
out.append(".globl k1_kernel\n.type k1_kernel,@function\n.globl k2_kernel\n.type k2_kernel,@function")
out.append(".p2align 8")
k1()
k2v = k2()
out += L
def kd(name, nv, acc):
    return f""".amdhsa_kernel {name}
  .amdhsa_next_free_vgpr {nv}
  .amdhsa_next_free_sgpr 96
  .amdhsa_accum_offset {acc}
  .amdhsa_group_segment_fixed_size 0
  .amdhsa_kernarg_size 80
  .amdhsa_user_sgpr_count 2
  .amdhsa_user_sgpr_kernarg_segment_ptr 1
  .amdhsa_system_sgpr_workgroup_id_x 1
.end_amdhsa_kernel"""
out.append('.section .rodata,"a"')
out.append(".p2align 6")
out.append(kd("k1_kernel", 224, 224))
out.append(".p2align 6")
out.append(kd("k2_kernel", k2v, (k2v + 3) // 4 * 4))
open(sys.argv[1], "w").write("\n".join(out) + "\n")
```

```python
import sys, struct

NAME = "parallel_sum__sliding_local_dilated__glu_gated_geglu__prompt"
OPT = dict(stats=0, k2_P=4, prof=0, wt=3, pf=0, slp=16, dbgt=0, pfd=3, rpg=2, trplain=0, nobar=0, prio=0, noadv=0, nodma=0, nomfma=0, nolds=0)
for a in sys.argv[2:]:
    k, v = a.split("=")
    OPT[k] = int(v)

L = []
WT = ['', ' sc0 sc1', ' nt', ' sc1', ' sc0 sc1 nt'][OPT['wt']]
def e(s): L.append("    " + s)
def lab(s): L.append(s + ":")
def cm(s): L.append("    ; " + s)
def f32(x): return "0x%08x" % struct.unpack("<I", struct.pack("<f", x))[0]
def vr(a, n): return "v[%d:%d]" % (a, a + n - 1)
def sr(a, n): return "s[%d:%d]" % (a, a + n - 1)

A2_BYTES = 32 * 74 * 4096
W2_OFF = 0xA00000
W2_BYTES = 8 * 74 * 5120
WS_USED = W2_OFF + W2_BYTES
CS_OFF = WS_USED
RS_OFF = CS_OFF + 3 * 5504 * 4
FL_OFF = RS_OFF + 2048 * 8
WS_USED = FL_OFF + 256 * 128
LS = 160064
PROF_OFF = 0x2000000
if OPT['prof']: WS_USED = PROF_OFF + 0x100000

XSLOT = 32768
WBASE = 3 * XSLOT
WREGB = 6176
WSLOT = 12352
EX = 102400
EXC = EX + 2048
QP = 392
K1_LDS = 163840

def srd(d, b, nbytes):
    e(f"s_mov_b32 s{d}, s{b}")
    e(f"s_and_b32 s{d+1}, s{b+1}, 0xffff")
    e(f"s_mov_b32 s{d+2}, {nbytes}")
    e(f"s_mov_b32 s{d+3}, 0x00020000")

def dstamp(i):
    if OPT["dbgt"]: e(f"s_memrealtime s[{80+2*i}:{81+2*i}]")
def stamp(i):
    if OPT["prof"]:
        e(f"s_memrealtime s[{80+2*i}:{81+2*i}]")
        if i == 1: e("s_memtime s[92:93]")
        if i == 2: e("s_memtime s[76:77]")
def tick(r):
    if OPT["prof"]:
        e(f"s_memtime s[98:99]"); e("s_waitcnt lgkmcnt(0)"); e(f"s_sub_u32 s{r}, 0, s98")
def tock(r):
    if OPT["prof"]:
        e(f"s_memtime s[98:99]"); e("s_waitcnt lgkmcnt(0)"); e(f"s_add_u32 s{r}, s{r}, s98")
def stamp_store(kidx, n, sWS, sW, vt):
    if not OPT["prof"]: return
    e(f"s_memrealtime s[{80+2*(n-1)}:{81+2*(n-1)}]")
    e("s_waitcnt lgkmcnt(0)")
    e(f"s_lshl_b32 s94, s2, 3")
    e(f"s_add_u32 s94, s94, s{sW}")
    e(f"s_lshl_b32 s94, s94, 5")
    e(f"s_add_u32 s94, s94, {PROF_OFF + kidx*0x40000}")
    e(f"v_mov_b32 v{vt+8}, 0")
    for i in range(n):
        e(f"v_mov_b32 v{vt+i}, s{80+2*i}")
    for i in range(n, 8):
        e(f"v_mov_b32 v{vt+i}, 0")
    e(f"s_sub_u32 s92, s76, s92")
    e(f"v_mov_b32 v{vt+7}, s92")
    e(f"v_mov_b32 v{vt+6}, s96")
    if n < 6: e(f"v_mov_b32 v{vt+5}, s97")
    e("s_mov_b64 exec, 1")
    e(f"buffer_store_dwordx4 {vr(vt,4)}, v{vt+8}, {sr(sWS,4)}, s94 offen")
    e(f"buffer_store_dwordx4 {vr(vt+4,4)}, v{vt+8}, {sr(sWS,4)}, s94 offen offset:16")

def k1():
    sX, sWA, sWB, sWS = 8, 12, 16, 20
    sW, sWM, sWN, sROT = 40, 41, 42, 43
    sTYPE, sC, sR0, sPITCH = 44, 45, 46, 47
    sJ, sOB, sCOLB = 48, 49, 50
    sI = 51
    sXSO, sWSO, sWSTEP = 52, 53, 54
    sXD, sWD = 55, 56
    sXR, sWR = 57, 58
    sT0, sT1, sT2, sT3 = 60, 61, 62, 63
    sEXM = 64
    sONE = 66
    sFULL = 68
    sST = 70
    sMT = 73
    vL, vM, vH = 1, 2, 3
    vXV = 72
    vWVA, vWVB = 8, 9
    vXB, vWA0, vWA1 = 10, 11, 12
    vTA = 13
    vXB0, vWB0, vWB1 = 21, 22, 23
    vS1, vS2 = 14, 16
    vCS = 18
    vT = 24
    FA, FB = 88, 108
    ACC = 128

    vWV, vPF, vDUM = 80, 83, 84
    sMAXR, sPFS = 74, 75
    sPF = sWB
    def piece_x(i):
        r = []
        if i == 0: r.append(f"s_mov_b32 m0, s{sXD}")
        else: r.append(f"s_add_u32 m0, s{sXD}, {1024*i}")
        r.append("s_nop 0")
        r.append(f"buffer_load_dwordx4 v{vXV+i}, {sr(sX,4)}, s{sXSO} offen lds")
        if i == 7:
            r += [f"s_add_u32 s{sXD}, s{sXD}, {XSLOT}", f"s_add_u32 s{sXSO}, s{sXSO}, {0 if OPT['noadv'] else 128}",
                  f"s_cmp_ge_u32 s{sXD}, {3*XSLOT}", f"s_cselect_b32 s{sT0}, {3*XSLOT}, 0",
                  f"s_sub_u32 s{sXD}, s{sXD}, s{sT0}"]
        return r
    def piece_w(i):
        r = []
        if i == 0: r.append(f"s_mov_b32 m0, s{sWD}")
        else: r.append(f"s_add_u32 m0, s{sWD}, {1024*i}")
        r.append("s_nop 0")
        r.append(f"buffer_load_dwordx4 v{vWV+i}, {sr(sWA,4)}, s{sWSO} offen lds")
        if i == 2:
            r += [f"s_add_u32 s{sWD}, s{sWD}, {WSLOT}",
                f"s_add_u32 s{sWSO}, s{sWSO}, 0" if OPT['noadv'] else f"s_add_u32 s{sWSO}, s{sWSO}, s{sWSTEP}",
                f"s_cmp_ge_u32 s{sWD}, {WBASE + 5*WSLOT}",
                f"s_cselect_b32 s{sT0}, {5*WSLOT}, 0",
                f"s_sub_u32 s{sWD}, s{sWD}, s{sT0}"]
        return r
    def piece_pf():
        if not OPT["pf"]: return []
        return [f"buffer_load_dword v{vDUM}, v{vPF}, {sr(sPF,4)}, s{sXSO} offen",
                f"s_add_u32 s{sXSO}, s{sXSO}, s{sPFS}"]
    def pf_setup():
        t0, t1, t2, t3 = 64, 65, 66, 67
        e(f"s_and_b32 s{sT0}, s2, 7")
        e(f"s_lshr_b32 s{sT1}, s2, 3")
        e(f"s_and_b32 s{sT2}, s{sT0}, 1")
        e(f"s_lshr_b32 s{sT3}, s{sT0}, 1")
        e(f"s_cmp_eq_u32 s{sW}, 4")
        e(f"s_cbranch_scc0 K1_PF_W{pf_setup.n}")
        srd(sPF, 24, 2048 * 1280)
        e(f"s_lshl_b32 s{sT2}, s{sT2}, 10")
        e(f"s_mul_i32 s{sT1}, s{sT1}, 40")
        e(f"s_add_u32 s{sT1}, s{sT1}, s{sT2}")
        e(f"v_add_u32 v{t0}, s{sT1}, v{vL}")
        e(f"v_mul_u32_u24 v{vPF}, 1280, v{t0}")
        e(f"v_cmp_gt_u32 vcc, 40, v{vL}")
        e(f"s_movk_i32 s{sPFS}, 128")
        e(f"s_movk_i32 s{sXSO}, 256")
        e(f"s_branch K1_PF_E{pf_setup.n}")
        lab(f"K1_PF_W{pf_setup.n}")
        e(f"s_cmp_eq_u32 s{sW}, 7")
        e(f"s_cbranch_scc1 K1_PF_Q{pf_setup.n}")
        e(f"s_cmp_eq_u32 s{sW}, 5")
        e(f"s_cselect_b32 s{sPF}, s32, s34")
        e(f"s_cselect_b32 s{sPF+1}, s33, s35")
        srd(sPF, sPF, 640 * 1728 * 2)
        e(f"s_mul_i32 s{sT3}, s{sT3}, 18")
        e(f"s_lshr_b32 s{sT3}, s{sT3}, 2")
        e(f"s_mul_i32 s{sT3}, s{sT3}, 192")
        e(f"s_mul_i32 s{sT1}, s{sT1}, 6912")
        e(f"s_add_u32 s{sT1}, s{sT1}, s{sT3}")
        e(f"v_lshrrev_b32 v{t0}, 4, v{vL}")
        e(f"v_and_b32 v{t1}, 15, v{vL}")
        e(f"v_mul_u32_u24 v{t2}, 3456, v{t0}")
        e(f"v_lshl_add_u32 v{t2}, v{t1}, 7, v{t2}")
        e(f"v_add_u32 v{vPF}, s{sT1}, v{t2}")
        e(f"v_lshl_add_u32 v{t0}, v{t0}, 3, v{t1}")
        e(f"v_cmp_gt_u32 vcc, 8, v{t1}")
        e(f"v_cmp_gt_u32 s[{sT2}:{sT3}], 32, v{vL}")
        e(f"s_and_b64 vcc, vcc, s[{sT2}:{sT3}]")
        e(f"s_mov_b32 s{sPFS}, {64*3456}")
        e(f"s_mov_b32 s{sXSO}, {128*3456}")
        e(f"s_branch K1_PF_E{pf_setup.n}")
        lab(f"K1_PF_Q{pf_setup.n}")
        srd(sPF, 26, 640 * 1920 * 2)
        e(f"s_mul_i32 s{sT3}, s{sT3}, 14")
        e(f"s_mul_i32 s{sT0}, s{sT3}, 205")
        e(f"s_lshr_b32 s{sT0}, s{sT0}, 10")
        e(f"s_lshr_b32 s{sT3}, s{sT3}, 2")
        e(f"s_cmp_eq_u32 s{sT2}, 0")
        e(f"s_cselect_b32 s{sT3}, s{sT0}, s{sT3}")
        e(f"s_mul_i32 s{sT3}, s{sT3}, 120")
        e(f"s_mul_i32 s{sT1}, s{sT1}, 7680")
        e(f"s_add_u32 s{sT1}, s{sT1}, s{sT3}")
        e(f"v_lshrrev_b32 v{t0}, 3, v{vL}")
        e(f"v_and_b32 v{t1}, 7, v{vL}")
        e(f"v_mul_u32_u24 v{t2}, 1280, v{t0}")
        e(f"v_lshl_add_u32 v{t2}, v{t1}, 7, v{t2}")
        e(f"v_add_u32 v{vPF}, s{sT1}, v{t2}")
        e(f"v_cmp_gt_u32 vcc, 5, v{t1}")
        e(f"v_cmp_gt_u32 s[{sT2}:{sT3}], 48, v{vL}")
        e(f"s_and_b64 vcc, vcc, s[{sT2}:{sT3}]")
        e(f"s_mov_b32 s{sPFS}, {64*3840}")
        e(f"s_mov_b32 s{sXSO}, {128*3840}")
        lab(f"K1_PF_E{pf_setup.n}")
        e(f"v_mov_b32 v{t0}, 0x7f000000")
        e(f"v_cndmask_b32 v{vPF}, v{t0}, v{vPF}, vcc")
        pf_setup.n += 1
    pf_setup.n = 0

    sSS = 76
    vSL, vSR, vAC = 24, 52, 64
    def ss_setup():
        t0, t1, t2 = 64, 65, 66
        e(f"s_mul_i32 s{sT0}, s2, 171")
        e(f"s_lshr_b32 s{sT0}, s{sT0}, 9")
        e(f"s_mul_i32 s{sT1}, s{sT0}, 3")
        e(f"s_sub_u32 s{sT1}, s2, s{sT1}")
        e(f"s_mul_i32 s{sMT}, s{sT1}, 5504")
        e(f"s_lshl_b32 s{sT2}, s{sT0}, 6")
        e(f"s_add_u32 s{sMT}, s{sMT}, s{sT2}")
        e(f"s_lshl_b32 s{sMT}, s{sMT}, 2")
        e(f"s_add_u32 s{sMT}, s{sMT}, {CS_OFF}")
        e(f"s_movk_i32 s{sT2}, 3456")
        e(f"s_mov_b32 s{sSS+2}, {640*1728*2}")
        e(f"s_cmp_lt_u32 s{sT0}, 27")
        e(f"s_cselect_b32 s{sSS}, s32, s34")
        e(f"s_cselect_b32 s{sSS+1}, s33, s35")
        e(f"s_cselect_b32 s{sT3}, 0, 27")
        e(f"s_cmp_lt_u32 s{sT0}, 54")
        e(f"s_cselect_b32 s{sSS}, s{sSS}, s26")
        e(f"s_cselect_b32 s{sSS+1}, s{sSS+1}, s27")
        e(f"s_cselect_b32 s{sT3}, s{sT3}, 54")
        e(f"s_cselect_b32 s{sT2}, s{sT2}, 3840")
        e(f"s_cselect_b32 s{sSS+2}, s{sSS+2}, {640*1920*2}")
        e(f"s_and_b32 s{sSS+1}, s{sSS+1}, 0xffff")
        e(f"s_mov_b32 s{sSS+3}, 0x00020000")
        e(f"s_sub_u32 s{sT0}, s{sT0}, s{sT3}")
        e(f"s_lshl_b32 s{sT0}, s{sT0}, 7")
        e(f"s_mul_i32 s{sT1}, s{sT1}, 224")
        e(f"s_lshl_b32 s{sT3}, s{sW}, 3")
        e(f"s_add_u32 s{sT1}, s{sT1}, s{sT3}")
        e(f"s_sub_u32 s{sT1}, s{sT1}, 32")
        e(f"v_lshrrev_b32 v{t0}, 3, v{vL}")
        e(f"v_add_u32 v{t0}, s{sT1}, v{t0}")
        e(f"v_mul_lo_u32 v{t0}, v{t0}, s{sT2}")
        e(f"v_and_b32 v{t1}, 7, v{vL}")
        e(f"v_lshl_add_u32 v{t0}, v{t1}, 4, v{t0}")
        e(f"s_lshl_b32 s{sT2}, s{sT2}, 5")
        for i in range(7):
            e(f"buffer_load_dwordx4 {vr(vSL+4*i,4)}, v{t0}, {sr(sSS,4)}, s{sT0} offen")
            if i < 6: e(f"s_add_u32 s{sT0}, s{sT0}, s{sT2}")
        e(f"s_lshl_b32 s{sT0}, s2, 2")
        e(f"s_add_u32 s{sT0}, s{sT0}, s{sW}")
        e(f"s_sub_u32 s{sT0}, s{sT0}, 4")
        e(f"s_mul_i32 s{sT0}, s{sT0}, 2560")
        e(f"v_mul_u32_u24 v{t1}, 1280, v{vH}")
        e(f"v_lshl_add_u32 v{t1}, v{vM}, 4, v{t1}")
        e(f"v_lshrrev_b32 v{t2}, 4, v{vM}")
        e(f"v_lshl_add_u32 v{t2}, v{t2}, 30, v{t1}")
        e(f"buffer_load_dwordx4 {vr(vSR,4)}, v{t1}, {sr(sX,4)}, s{sT0} offen")
        e(f"buffer_load_dwordx4 {vr(vSR+4,4)}, v{t1}, {sr(sX,4)}, s{sT0} offen offset:512")
        e(f"buffer_load_dwordx4 {vr(vSR+8,4)}, v{t2}, {sr(sX,4)}, s{sT0} offen offset:1024")
    def ss_compute(nafter):
        a, b, c_, d = vS1, vS1 + 1, vS2, vS2 + 1
        t = vCS
        e(f"s_lshl_b32 s{sT0}, s{sW}, 8")
        e(f"s_add_u32 s{sT0}, s{sT0}, {LS - 1024}")
        e(f"s_mov_b32 s{sONE}, 0x3f803f80")
        for r in (a, b, c_, d): e(f"v_mov_b32 v{r}, 0")
        e(f"s_waitcnt vmcnt({nafter})")
        for q in range(4):
            e(f"v_lshlrev_b32 v{vAC+2*q}, 16, v{vSL+q}")
            e(f"v_and_b32 v{vAC+2*q+1}, 0xffff0000, v{vSL+q}")
        for i in range(1, 7):
            for q in range(4):
                r = vSL + 4 * i + q
                e(f"v_lshlrev_b32 v{t+1}, 16, v{r}")
                e(f"v_and_b32 v{r}, 0xffff0000, v{r}")
                e(f"v_add_f32 v{vAC+2*q}, v{vAC+2*q}, v{t+1}")
                e(f"v_add_f32 v{vAC+2*q+1}, v{vAC+2*q+1}, v{r}")
        e(f"v_and_b32 v{t+1}, 7, v{vL}")
        e(f"v_lshl_add_u32 v{t}, v{t+1}, 5, s{sT0}")
        e(f"v_lshrrev_b32 v{t+1}, 4, v{vL}")
        e(f"v_lshl_add_u32 v{t}, v{t+1}, 3, v{t}")
        for q in range(4): e(f"v_permlane32_swap_b32 v{vAC+q}, v{vAC+q+4}")
        e("s_nop 1")
        for q in range(4): e(f"v_add_f32 v{vAC+q}, v{vAC+q}, v{vAC+q+4}")
        e("s_nop 1")
        for q in range(2): e(f"v_permlane16_swap_b32 v{vAC+q}, v{vAC+q+2}")
        e("s_nop 1")
        for q in range(2): e(f"v_add_f32 v{vAC+q}, v{vAC+q}, v{vAC+q+2}")
        e("s_nop 1")
        for q in range(2): e(f"v_add_f32_dpp v{vAC+q}, v{vAC+q}, v{vAC+q} row_ror:8 row_mask:0xf bank_mask:0xf")
        e(f"ds_write_b64 v{t}, {vr(vAC,2)}")
        for q in range(12):
            e(f"v_dot2c_f32_bf16 v{(a,b)[q&1]}, s{sONE}, v{vSR+q}")
            e(f"v_dot2c_f32_bf16 v{(c_,d)[q&1]}, v{vSR+q}, v{vSR+q}")
        e("s_nop 2")
        e(f"v_add_f32 v{a}, v{a}, v{b}")
        e(f"v_add_f32 v{c_}, v{c_}, v{d}")
        for dpp in ("quad_perm:[1,0,3,2]", "quad_perm:[2,3,0,1]", "row_half_mirror", "row_mirror"):
            e("s_nop 1")
            e(f"v_add_f32_dpp v{a}, v{a}, v{a} {dpp} row_mask:0xf bank_mask:0xf")
            e(f"v_add_f32_dpp v{c_}, v{c_}, v{c_} {dpp} row_mask:0xf bank_mask:0xf")
        e(f"v_mov_b32 v{b}, v{a}")
        e(f"v_mov_b32 v{d}, v{c_}")
        e("s_nop 1")
        e(f"v_permlane16_swap_b32 v{a}, v{b}")
        e(f"v_permlane16_swap_b32 v{c_}, v{d}")
        e("s_nop 1")
        e(f"v_add_f32 v{a}, v{a}, v{b}")
        e(f"v_add_f32 v{c_}, v{c_}, v{d}")
        e(f"v_mul_f32 v{a}, {f32(1.0/640)}, v{a}")
        e(f"v_mul_f32 v{c_}, {f32(1.0/640)}, v{c_}")
        e(f"v_fma_f32 v{c_}, -v{a}, v{a}, v{c_}")
        e(f"v_max_f32 v{c_}, 0, v{c_}")
        e(f"v_cvt_pk_bf16_f32 v{a}, v{a}, v{a}")
        e(f"v_cvt_pk_bf16_f32 v{c_}, v{c_}, v{c_}")
        e(f"v_and_b32 v{c_}, 0xffff0000, v{c_}")
        e(f"v_add_f32 v{c_}, {f32(1e-5)}, v{c_}")
        e(f"v_cvt_pk_bf16_f32 v{c_}, v{c_}, v{c_}")
        e(f"v_and_b32 v{c_}, 0xffff0000, v{c_}")
        e(f"v_sqrt_f32 v{c_}, v{c_}")
        e(f"s_lshl_b32 s{sT0}, s{sW}, 4")
        e(f"s_add_u32 s{sT0}, s{sT0}, {LS + 1024 - 64}")
        e(f"v_cvt_pk_bf16_f32 v{c_}, v{c_}, v{c_}")
        e(f"v_and_b32 v{b}, 0xffff0000, v{c_}")
        e(f"v_lshl_add_u32 v{t}, v{vH}, 3, s{sT0}")
        e(f"ds_write_b64 v{t}, {vr(a,2)}")
        e("s_waitcnt lgkmcnt(0)")
    def ss_publish():
        t = vSL
        e(f"v_lshlrev_b32 v{t}, 2, v{vL}")
        e(f"v_add_u32 v{t+1}, {LS}, v{t}")
        for q in range(4):
            e(f"ds_read_b32 v{t+2+q}, v{t+1} offset:{256*q}")
        e(f"ds_read_b32 v{t+6}, v{t+1} offset:1024")
        e(f"v_lshrrev_b32 v{t+7}, 4, v{vL}")
        e(f"v_min_u32 v{t+7}, 1, v{t+7}")
        e(f"v_lshl_add_u32 v{t+7}, v{t+7}, 30, v{t}")
        e(f"s_lshl_b32 s{sT0}, s2, 6")
        e(f"s_add_u32 s{sT0}, s{sT0}, {RS_OFF}")
        e("s_waitcnt lgkmcnt(0)")
        e(f"v_add_f32 v{t+2}, v{t+2}, v{t+3}")
        e(f"v_add_f32 v{t+4}, v{t+4}, v{t+5}")
        e(f"v_add_f32 v{t+2}, v{t+2}, v{t+4}")
        e(f"buffer_store_dword v{t+2}, v{t}, {sr(sWS,4)}, s{sMT} offen sc1")
        e(f"buffer_store_dword v{t+6}, v{t+7}, {sr(sWS,4)}, s{sT0} offen sc1")
        e(f"s_lshl_b32 s{sT0}, s2, 7")
        e(f"s_add_u32 s{sT0}, s{sT0}, {FL_OFF}")
        e(f"v_mov_b32 v{t+3}, 0")
        e(f"buffer_store_dword v{t+3}, v{t+7}, {sr(sWS,4)}, s{sT0} offen sc1")
    def signal(nafter, idx_s, base):
        t = vSL + 8
        srd(sSS, 4, 256)
        e(f"s_lshl_b32 s{sT0}, s{idx_s}, 2")
        e(f"v_mov_b32 v{t}, {4*base}")
        e(f"v_mov_b32 v{t+1}, 1")
        e(f"s_waitcnt vmcnt({nafter})")
        e("s_mov_b64 exec, 1")
        e(f"buffer_atomic_add v{t+1}, v{t}, {sr(sSS,4)}, s{sT0} offen sc1")
        e("s_mov_b64 exec, -1")

    lab(f"k1_kernel")
    e("s_cmp_ge_u32 s2, 256")
    e("s_cbranch_scc1 K1_END")
    stamp(0); dstamp(0)
    e("s_load_dwordx4 s[24:27], s[0:1], 0")
    e("s_load_dwordx2 s[28:29], s[0:1], 16")
    e("s_load_dwordx4 s[32:35], s[0:1], 32")
    e("s_load_dwordx4 s[36:39], s[0:1], 48")
    e("s_load_dwordx4 s[4:7], s[0:1], 64")
    e(f"v_lshrrev_b32 v{vT}, 6, v0")
    e(f"v_and_b32 v{vL}, 63, v0")
    e(f"v_readfirstlane_b32 s{sW}, v{vT}")
    e(f"v_and_b32 v{vM}, 31, v0")
    e(f"v_bfe_u32 v{vH}, v0, 5, 1")
    cm("role decode")
    e(f"s_movk_i32 s{sMAXR}, 0x7ff")
    e(f"s_and_b32 s{sT0}, s2, 7")
    e(f"s_lshr_b32 s{sT1}, s2, 3")
    e(f"s_and_b32 s{sT2}, s{sT0}, 1")
    e(f"s_lshr_b32 s{sT3}, s{sT0}, 1")
    e(f"s_lshr_b32 s{sWM}, s{sW}, 1")
    e(f"s_and_b32 s{sWN}, s{sW}, 1")
    e(f"s_and_b32 s{sROT}, s{sWM}, 1")
    e(f"s_cmp_lt_u32 s{sT1}, 18")
    e("s_cbranch_scc0 K1_NOTFF")
    cm("ff")
    e(f"s_mul_i32 s{sT0}, s{sT3}, 18")
    e(f"s_add_u32 s{sT0}, s{sT0}, s{sT1}")
    e(f"s_lshr_b32 s{sC}, s{sT0}, 2")
    e(f"s_and_b32 s{sT0}, s{sT0}, 3")
    e(f"s_lshl_b32 s{sT2}, s{sT2}, 2")
    e(f"s_add_u32 s{sT0}, s{sT0}, s{sT2}")
    e(f"s_lshl_b32 s{sR0}, s{sT0}, 8")
    e(f"s_mov_b32 s{sTYPE}, 0")
    e(f"s_movk_i32 s{sPITCH}, 3456")
    e(f"s_mov_b32 s{sJ}, 0")
    e(f"s_mov_b32 s{sOB}, 0")
    e(f"s_mul_i32 s{sCOLB}, s{sC}, 192")
    e("s_waitcnt lgkmcnt(0)")
    srd(sWA, 32, 640 * 1728 * 2)
    srd(sWB, 34, 640 * 1728 * 2)
    e("s_branch K1_COMMON")
    lab("K1_NOTFF")
    e(f"s_mul_i32 s{sT0}, s{sT3}, 14")
    e(f"s_add_u32 s{sT0}, s{sT0}, s{sT1}")
    e(f"s_sub_u32 s{sT0}, s{sT0}, 18")
    e(f"s_cmp_eq_u32 s{sT2}, 0")
    e("s_cbranch_scc0 K1_MH1")
    e(f"s_mov_b32 s{sT1}, 0")
    e(f"s_cmp_lt_u32 s{sT0}, 55")
    e("s_cbranch_scc0 K1_SPARE")
    e(f"s_mul_i32 s{sC}, s{sT0}, 205")
    e(f"s_lshr_b32 s{sC}, s{sC}, 10")
    e(f"s_mul_i32 s{sT1}, s{sC}, 5")
    e(f"s_sub_u32 s{sT1}, s{sT0}, s{sT1}")
    e("s_branch K1_ATT")
    lab("K1_MH1")
    e(f"s_sub_u32 s{sT1}, s{sT0}, 43")
    e(f"s_cmp_lt_u32 s{sT0}, 44")
    e("s_cbranch_scc0 K1_SPARE")
    e(f"s_lshr_b32 s{sC}, s{sT0}, 2")
    e(f"s_and_b32 s{sT1}, s{sT0}, 3")
    e(f"s_add_u32 s{sT1}, s{sT1}, 5")
    lab("K1_ATT")
    e(f"s_mul_i32 s{sR0}, s{sT1}, 240")
    e(f"s_sub_u32 s{sR0}, s{sR0}, 16")
    e(f"s_mov_b32 s{sTYPE}, 1")
    e(f"s_movk_i32 s{sPITCH}, 3840")
    e(f"s_movk_i32 s{sJ}, 1152")
    e(f"s_movk_i32 s{sOB}, 1344")
    e(f"s_mul_i32 s{sCOLB}, s{sC}, 120")
    e("s_waitcnt lgkmcnt(0)")
    srd(sWA, 26, 640 * 1920 * 2)
    srd(sWB, 26, 640 * 1920 * 2)
    lab("K1_COMMON")
    srd(sX, 24, 2048 * 1280)
    srd(sWS, 6, WS_USED)
    t0, t1, t2, t3, t4 = vT, vT + 1, vT + 2, vT + 3, vT + 4
    e(f"s_mov_b32 s{sXSO}, 0")
    e(f"s_mov_b32 s{sWSO}, 0")
    e(f"s_cmp_lt_u32 s{sW}, 4")
    e("s_cbranch_scc0 K1_PFSETUP")
    cm("x dma voffsets (waves 0-3: rows 64w..64w+63)")
    e(f"v_lshrrev_b32 v{t0}, 3, v{vL}")
    e(f"v_and_b32 v{t1}, 7, v{vL}")
    e(f"v_bfe_u32 v{t3}, v{t0}, 1, 2")
    e(f"v_xor_b32 v{t3}, v{t3}, v{t1}")
    e(f"v_lshlrev_b32 v{t3}, 4, v{t3}")
    e(f"v_xor_b32 v{t4}, 64, v{t3}")
    e(f"s_lshl_b32 s{sT0}, s{sW}, 6")
    e(f"s_add_i32 s{sT0}, s{sT0}, s{sR0}")
    e(f"s_movk_i32 s{sT1}, 1280")
    e(f"v_add_u32 v{t0}, s{sT0}, v{t0}")
    e(f"s_lshl_b32 s{sXD}, s{sW}, 13")
    for i in range(8):
        e(f"v_add_u32 v{t2}, {8*i}, v{t0}")
        e(f"v_med3_i32 v{t2}, v{t2}, 0, s{sMAXR}")
        e(f"v_mad_u32_u24 v{vXV+i}, v{t2}, s{sT1}, v{t4 if i&1 else t3}")
    for i in range(8):
        for q in piece_x(i): e(q)
    cm("W dma voffsets: piece p=3w+i ; region=w>>1 ; lin=(p%6)*1024+l*16")
    e(f"s_and_b32 s{sT0}, s{sW}, 1")
    e(f"s_mul_i32 s{sT0}, s{sT0}, 192")
    e(f"s_lshr_b32 s{sT2}, s{sW}, 1")
    e(f"s_mul_i32 s{sWD}, s{sT2}, {WREGB}")
    e(f"s_lshl_b32 s{sT3}, s{sT0}, 4")
    e(f"s_add_u32 s{sWD}, s{sWD}, s{sT3}")
    e(f"s_add_u32 s{sWD}, s{sWD}, {WBASE}")
    e(f"s_mul_i32 s{sT3}, s{sT2}, s{sOB}")
    e(f"s_add_u32 s{sCOLB}, s{sCOLB}, s{sT3}")
    e(f"s_lshr_b32 s{sT3}, 8, s{sT2}")
    e(f"s_cmp_eq_u32 s{sT2}, 0")
    e(f"s_cselect_b32 s{sWA}, s{sWA}, s{sWB}")
    e(f"s_cselect_b32 s{sWA+1}, s{sWA+1}, s{sWB+1}")
    e(f"s_lshl_b32 s{sWSTEP}, s{sPITCH}, 5")
    e(f"v_mov_b32 v{t4}, s{sJ}")
    for i in range(3):
        e(f"v_add_u32 v{t0}, s{sT0}, v{vL}")
        if i: e(f"v_add_u32 v{t0}, {64*i}, v{t0}")
        e(f"v_mul_u32_u24 v{t1}, 0xaab, v{t0}")
        e(f"v_lshrrev_b32 v{t1}, 15, v{t1}")
        e(f"v_mul_u32_u24 v{t2}, 12, v{t1}")
        e(f"v_sub_u32 v{t0}, v{t0}, v{t2}")
        e(f"v_cmp_le_u32 vcc, s{sT3}, v{t0}")
        e(f"v_mul_lo_u32 v{t1}, v{t1}, s{sPITCH}")
        e(f"v_lshl_add_u32 v{t1}, v{t0}, 4, v{t1}")
        e(f"v_cndmask_b32 v{t2}, 0, v{t4}, vcc")
        e(f"v_add3_u32 v{vWV+i}, v{t1}, v{t2}, s{sCOLB}")
    for r in range(2):
        for i in range(3):
            for q in piece_w(i): e(q)
    for i in range(8):
        for q in piece_x(i): e(q)
    for r in range(2):
        for i in range(3):
            for q in piece_w(i): e(q)
    e(f"v_mov_b32 v{vPF}, 0x7f000000")
    srd(sSS, 4, 256)
    e(f"s_mov_b32 s{sMT}, 0")
    e("s_branch K1_SETUP2")
    lab("K1_PFSETUP")
    if OPT["slp"]: e(f"s_sleep {OPT['slp']}")
    ss_setup()
    pf_setup()
    for i in range(OPT["pfd"]):
        for q in piece_pf(): e(q)
    for r in range(vXV, vWV + 3): e(f"v_mov_b32 v{r}, 0x7f000000")
    lab("K1_SETUP2")
    e(f"s_mov_b64 s[{sFULL}:{sFULL+1}], exec")
    cm("LDS read addresses")
    t0, t1, t2, t3, t4 = 64, 65, 66, 67, 68
    e(f"v_bfe_u32 v{t0}, v{vM}, 1, 3")
    e(f"v_xor_b32 v{t0}, v{t0}, v{vH}")
    e(f"s_lshl_b32 s{sT0}, s{sROT}, 1")
    e(f"v_xor_b32 v{t0}, s{sT0}, v{t0}")
    e(f"v_lshlrev_b32 v{t0}, 4, v{t0}")
    e(f"v_lshl_add_u32 v{t0}, v{vM}, 7, v{t0}")
    e(f"s_lshl_b32 s{sT0}, s{sW}, 12")
    e(f"v_add_u32 v{vXB0}, s{sT0}, v{t0}")
    e(f"v_add_u32 v{vXB}, s{sT0}, v{t0}")
    e(f"v_bfe_u32 v{t0}, v{vL}, 4, 1")
    e(f"v_mul_u32_u24 v{t0}, {WREGB}, v{t0}")
    e(f"v_bfe_u32 v{t1}, v{vL}, 2, 2")
    e(f"v_lshl_add_u32 v{t1}, v{vH}, 3, v{t1}")
    e(f"v_mul_u32_u24 v{t1}, 192, v{t1}")
    e(f"v_add_u32 v{t0}, v{t0}, v{t1}")
    e(f"v_and_b32 v{t1}, 1, v{vL}")
    e(f"v_lshl_add_u32 v{t0}, v{t1}, 4, v{t0}")
    e(f"v_bfe_u32 v{t1}, v{vL}, 1, 1")
    e(f"v_lshl_add_u32 v{t0}, v{t1}, 3, v{t0}")
    e(f"s_mul_i32 s{sT0}, s{sWN}, 96")
    e(f"s_add_u32 s{sT0}, s{sT0}, {WBASE}")
    e(f"s_mul_i32 s{sT1}, s{sROT}, 3072")
    e(f"s_add_u32 s{sT2}, s{sT0}, s{sT1}")
    e(f"v_add_u32 v{vWB0}, s{sT2}, v{t0}")
    e(f"v_add_u32 v{vWA0}, s{sT2}, v{t0}")
    e(f"s_sub_u32 s{sT2}, s{sT0}, s{sT1}")
    e(f"s_add_u32 s{sT2}, s{sT2}, 3072")
    e(f"v_add_u32 v{vWB1}, s{sT2}, v{t0}")
    e(f"s_mov_b32 s{sXR}, 0")
    e(f"s_mov_b32 s{sWR}, 0")
    for r in range(ACC, ACC + 96):
        e(f"v_mov_b32 v{r}, 0")

    def reads(F, wa, sp):
        if OPT["nolds"] == 1: return []
        g = []
        def xr(mbi):
            cst = 32 * sp + 4096 * mbi
            if cst == 0: return [f"ds_read_b128 {vr(F+4*mbi,4)}, v{vXB}"]
            return [f"v_xor_b32 v{vTA}, {cst}, v{vXB}", f"ds_read_b128 {vr(F+4*mbi,4)}, v{vTA}"]
        def wr(t, hh): return [f"ds_read_b64{'' if OPT['trplain'] else '_tr_b16'} {vr(F+8+4*t+2*hh,2)}, v{wa} offset:{32*t+768*hh}"]
        g = [xr(0), wr(0, 0), wr(0, 1), xr(1), wr(1, 0), wr(1, 1), wr(2, 0), wr(2, 1)]
        return g
    def adv_w():
        e(f"v_add_u32 v{vWA1}, s{sWR}, v{vWB1}")
        e(f"s_add_u32 s{sWR}, s{sWR}, {WSLOT}")
        e(f"s_cmp_ge_u32 s{sWR}, {5*WSLOT}")
        e(f"s_cselect_b32 s{sWR}, 0, s{sWR}")
        e(f"v_add_u32 v{vWA0}, s{sWR}, v{vWB0}")
    def adv_x():
        e(f"s_add_u32 s{sXR}, s{sXR}, {XSLOT}")
        e(f"s_cmp_ge_u32 s{sXR}, {3*XSLOT}")
        e(f"s_cselect_b32 s{sXR}, 0, s{sXR}")
        e(f"v_add_u32 v{vXB}, s{sXR}, v{vXB0}")
    def kstep(F, cs, rd, pieces, post=()):
        st = []
        if OPT["stats"]:
            for j in range(4):
                st.append(f"v_dot2c_f32_bf16 v{vS1+(j&1)}, s{sONE}, v{F+j}")
                st.append(f"v_dot2c_f32_bf16 v{vS2+(j&1)}, v{F+j}, v{F+j}")
            if cs:
                for j in range(4):
                    for t in range(3):
                        st.append(f"v_dot2c_f32_bf16 v{vCS+t}, s{sONE}, v{F+8+4*t+j}")
        RPG = OPT["rpg"]
        n = len(st); k = 0; idx = 0; ri = 0; pi = 0
        e("s_waitcnt lgkmcnt(0)")
        for t in range(3):
            for mbi in range(2):
                a = ACC + (mbi * 3 + t) * 16
                if not OPT["nomfma"]: e(f"v_mfma_f32_32x32x16_bf16 {vr(a,16)}, {vr(F+8+4*t,4)}, {vr(F+4*mbi,4)}, {vr(a,16)}")
                for _ in range(RPG):
                    if ri < len(rd):
                        for q in rd[ri]: e(q)
                        ri += 1
                if ri == len(rd):
                    for q in post: e(q)
                    post = ()
                idx += 1
                lo = 6 - len(pieces)
                if idx > lo and pi < len(pieces):
                    for q in pieces[pi]: e(q)
                    pi += 1
                while k < n * idx // 6:
                    e(st[k]); k += 1

    e("s_waitcnt vmcnt(17)")
    e("s_barrier")
    stamp(1); dstamp(1)
    for g in reads(FA, vWA0, 0):
        for q in g: e(q)
    e(f"s_mov_b32 s{sI}, 0")
    def advx_l():
        return [f"s_add_u32 s{sXR}, s{sXR}, {XSLOT}", f"s_cmp_ge_u32 s{sXR}, {3*XSLOT}",
                f"s_cselect_b32 s{sXR}, 0, s{sXR}", f"v_add_u32 v{vXB}, s{sXR}, v{vXB0}"]
    vST0, vST1, vPC = 24, 26, 28
    vPO, vPV = 34, 35
    def poll_issue():
        srd(sSS, 4, 256)
        e(f"v_and_b32 v{vPO}, 7, v{vL}")
        e(f"v_lshlrev_b32 v{vPO}, 2, v{vPO}")
        e(f"buffer_load_dword v{vPV}, v{vPO}, {sr(sSS,4)}, 0 offen sc1")
        a, b, c_ = 36, 37, 38
        e(f"s_lshl_b32 s{sT0}, s{sW}, 5")
        e(f"v_add_u32 v{a}, s{sT0}, v{vM}")
        e(f"v_xor_b32 v{b}, 32, v{a}")
        for r in (a, b):
            e(f"v_add_u32 v{r}, s{sR0}, v{r}")
            e(f"v_med3_i32 v{r}, v{r}, 0, s{sMAXR}")
            e(f"v_lshlrev_b32 v{r}, 3, v{r}")
        e(f"v_and_b32 v{c_}, 3, v{vM}")
        e(f"v_bfe_u32 v{c_+1}, v{vM}, 2, 1")
        e(f"v_lshl_add_u32 v{c_}, v{c_+1}, 3, v{c_}")
        e(f"v_bfe_u32 v{c_+1}, v{vM}, 3, 1")
        e(f"v_lshl_add_u32 v{c_}, v{c_+1}, 2, v{c_}")
        e(f"s_mul_i32 s{sT0}, s{sWN}, 48")
        e(f"v_add_u32 v{c_}, s{sT0}, v{c_}")
        e(f"v_lshrrev_b32 v{c_+1}, 4, v{vM}")
        e(f"s_cmp_eq_u32 s{sTYPE}, 0")
        e(f"s_cselect_b32 s{sT0}, 96, 60")
        e(f"s_mul_i32 s{sT0}, s{sT0}, s{sC}")
        e(f"s_cselect_b32 s{sT1}, 0, 3456")
        e(f"s_add_u32 s{sT0}, s{sT0}, s{sT1}")
        e(f"s_cmp_eq_u32 s{sTYPE}, 0")
        e(f"s_movk_i32 s{sT1}, 672")
        e(f"s_cselect_b32 s{sT1}, 1728, s{sT1}")
        e(f"v_mul_u32_u24 v{c_+2}, s{sT1}, v{c_+1}")
        e(f"v_add_u32 v{c_+2}, s{sT0}, v{c_+2}")
        e(f"v_lshrrev_b32 v{c_+1}, v{c_+1}, 64")
        e(f"s_lshr_b32 s{sT1}, s{sJ}, 1")
        e(f"v_mov_b32 v{c_+3}, s{sT1}")
        e(f"v_mul_u32_u24 v{c_+4}, {2*5504}, v{vH}")
        for t in range(3):
            e(f"v_add_u32 v{c_+5}, {16*t}, v{c_}")
            e(f"v_cmp_le_u32 vcc, v{c_+1}, v{c_+5}")
            e(f"v_add_u32 v{c_+5}, v{c_+5}, v{c_+2}")
            e("s_nop 0")
            e(f"v_cndmask_b32 v{c_+6}, 0, v{c_+3}, vcc")
            e(f"v_add_u32 v{c_+5}, v{c_+5}, v{c_+6}")
            e(f"v_lshlrev_b32 v{48+t}, 2, v{c_+5}")
            e(f"v_add_lshl_u32 v{52+t}, v{c_+5}, v{c_+4}, 2")
    def poll_check():
        e(f"s_mov_b32 s{sT1}, 0")
        tick(96)
        lab("K1_POLL")
        e(f"v_cmp_ne_u32 vcc, 32, v{vPV}")
        e("s_nop 4")
        e("s_cbranch_vccz K1_POLLOK")
        e("s_sleep 8")
        e(f"buffer_load_dword v{vPV}, v{vPO}, {sr(sSS,4)}, 0 offen sc1")
        e(f"s_add_u32 s{sT1}, s{sT1}, 1")
        e(f"s_cmp_lt_u32 s{sT1}, 0x4000")
        e("s_waitcnt vmcnt(0)")
        e("s_cbranch_scc1 K1_POLL")
        lab("K1_POLLOK")
        tock(96)
        e(f"s_mov_b32 s{sT0}, {RS_OFF}")
        e(f"s_mov_b32 s{sT1}, {CS_OFF}")
        e(f"s_mov_b32 s{sT2}, {CS_OFF + 5504*4}")
        e(f"buffer_load_dwordx2 {vr(vST0,2)}, v36, {sr(sWS,4)}, s{sT0} offen sc1")
        e(f"buffer_load_dwordx2 {vr(vST1,2)}, v37, {sr(sWS,4)}, s{sT0} offen sc1")
        for t in range(3):
            e(f"buffer_load_dword v{vPC+t}, v{52+t}, {sr(sWS,4)}, s{sT1} offen sc1")
            e(f"buffer_load_dword v{vPC+3+t}, v{48+t}, {sr(sWS,4)}, s{sT2} offen sc1")
    def body(mode, tag, cnt):
        dma = mode == "dma"
        if cnt: L.append(".p2align 6")
        lab(f"K1_LOOP{tag}")
        cm("---- even step")
        adv_w()
        if tag == "B": poll_issue()
        if mode in ("dma", "tail"): e("s_waitcnt vmcnt(15)" if tag == "B" else "s_waitcnt vmcnt(14)")
        if not OPT["nobar"]: e("s_barrier")
        kstep(FA, True, reads(FB, vWA1, 1), [piece_x(i) for i in range(4)] if dma else [piece_pf()] if mode == "pf" else [])
        kstep(FB, False, reads(FA, vWA0, 2), [piece_w(i) for i in range(3)] if dma else [])
        cm("---- odd step")
        adv_w()
        if mode in ("dma", "tail"): e("s_waitcnt vmcnt(10)" if dma else "s_waitcnt vmcnt(0)")
        if tag == "B": poll_check()
        if not OPT["nobar"]: e("s_barrier")
        kstep(FA, True, reads(FB, vWA1, 3), [piece_x(i) for i in range(4, 8)] if dma else [], advx_l())
        kstep(FB, False, reads(FA, vWA0, 0), [piece_w(i) for i in range(3)] if dma else [])
        if mode == "pf":
            npf = OPT["pfd"] if OPT["pf"] else 0
            inc = 1 if OPT["pf"] else 0
            e(f"s_cmp_eq_u32 s{sI}, 1")
            e("s_cbranch_scc0 K1_PH1")
            tick(97)
            ss_compute(npf + 2 * inc)
            tock(97)
            lab("K1_PH1")
            e(f"s_cmp_eq_u32 s{sW}, 4")
            e("s_cbranch_scc0 K1_PH3")
            e(f"s_cmp_eq_u32 s{sI}, 2")
            e("s_cbranch_scc0 K1_PH2")
            ss_publish()
            lab("K1_PH2")
            e(f"s_cmp_eq_u32 s{sI}, 4")
            e("s_cbranch_scc0 K1_PH3")
            e(f"s_and_b32 s{sT1}, s2, 7")
            signal(2 * inc, sT1, 0)
            lab("K1_PH3")
        if cnt:
            e(f"s_add_u32 s{sI}, s{sI}, 1")
            e(f"s_cmp_lt_u32 s{sI}, {cnt}")
            e(f"s_cbranch_scc1 K1_LOOP{tag}")
    e(f"s_cmp_lt_u32 s{sW}, 4")
    e("s_cbranch_scc0 K1_LOOPP")
    body("tail" if OPT["nodma"] else "dma", "A", 8)
    e("s_branch K1_LOOPB")
    body("pf", "P", 8)
    body("tail", "B", 0)
    body("tail2", "C", 0)

    cm("mean correction")
    stamp(2); dstamp(2)
    a, b, c_, d = vT + 60, vT + 61, vT + 62, vT + 63
    e(f"v_cmp_eq_u32 vcc, 0, v{vH}")
    e(f"s_mov_b32 s{sT1}, 0xffff")
    e("s_waitcnt vmcnt(0) lgkmcnt(0)")
    for r in (FA + 2, FA + 3, FA + 6, FA + 7, FA + 10, FA + 11, FA + 14, FA + 15, FA + 18, FA + 19):
        e(f"v_mov_b32 v{r}, 0")
    for t in range(3):
        e(f"v_cndmask_b32 v{vCS+t}, 0, v{vPC+3+t}, vcc")
    e(f"v_mov_b32 v{FA}, v{vST0}")
    e(f"v_and_b32 v{FA+1}, 0xffff, v{vST0}")
    e(f"v_mov_b32 v{FA+4}, v{vST1}")
    e(f"v_and_b32 v{FA+5}, 0xffff, v{vST1}")
    for t in range(3):
        cc, p, q, hf = vT + 12, vT + 13, vT + 14, vT + 15
        e(f"v_add_f32 v{cc}, v{vCS+t}, v{vPC+t}")
        e(f"v_sub_f32 v{cc}, 0, v{cc}")
        e(f"v_cvt_pk_bf16_f32 v{p}, v{cc}, v{cc}")
        e(f"v_and_b32 v{hf}, 0xffff0000, v{p}")
        e(f"v_sub_f32 v{cc}, v{cc}, v{hf}")
        e(f"v_cvt_pk_bf16_f32 v{q}, v{cc}, v{cc}")
        e(f"v_and_b32 v{hf}, 0xffff0000, v{q}")
        e(f"v_sub_f32 v{cc}, v{cc}, v{hf}")
        e(f"v_bfi_b32 v{FA+8+4*t}, s{sT1}, v{p}, v{q}")
        e(f"v_cvt_pk_bf16_f32 v{FA+9+4*t}, v{cc}, 0")
    e("s_nop 1")
    for t in range(3):
        for mbi in range(2):
            a_ = ACC + (mbi * 3 + t) * 16
            e(f"v_mfma_f32_32x32x16_bf16 {vr(a_,16)}, {vr(FA+8+4*t,4)}, {vr(FA+4*mbi,4)}, {vr(a_,16)}")
    vR = vT + 12
    e(f"v_rcp_f32 v{vR}, v{vST0+1}")
    e(f"v_rcp_f32 v{vR+1}, v{vST1+1}")
    stamp(3)
    e(f"s_cmp_eq_u32 s{sTYPE}, 0")
    e("s_cbranch_scc0 K1_EPI_ATT")

    cm("ff epilogue")
    K0 = -2.0 * 0.7978845608028654 * 1.4426950408889634
    K1c = K0 * 0.044715
    vC0, vC1, vI2 = vT + 14, vT + 16, vT + 18
    vSA = vT + 20
    for mbi in range(2):
        st = (vST0, vST1)[mbi]
        e(f"v_mul_f32 v{vC0+mbi}, {f32(K0)}, v{vR+mbi}")
        e(f"v_mul_f32 v{vC1+mbi}, v{vR+mbi}, v{vR+mbi}")
        e(f"v_mul_f32 v{vC1+mbi}, v{vC1+mbi}, v{vR+mbi}")
        e(f"v_mul_f32 v{vC1+mbi}, {f32(K1c)}, v{vC1+mbi}")
        e(f"v_mul_f32 v{vI2+mbi}, v{st+1}, v{st+1}")
    e(f"v_and_b32 v{a}, 15, v{vM}")
    e(f"v_lshlrev_b32 v{a}, 4, v{a}")
    e(f"v_lshl_add_u32 v{a}, v{vH}, 8, v{a}")
    e(f"v_lshrrev_b32 v{b}, 4, v{vM}")
    e(f"v_lshl_add_u32 v{a}, v{b}, 10, v{a}")
    e(f"s_lshl_b32 s{sT0}, s{sWN}, 11")
    e(f"v_add_u32 v{vSA}, s{sT0}, v{a}")
    e(f"v_xor_b32 v{vSA+1}, 2048, v{vSA}")
    e(f"s_lshr_b32 s{sT0}, s{sR0}, 6")
    e(f"s_add_u32 s{sT0}, s{sT0}, s{sWM}")
    e(f"s_mul_i32 s{sT0}, s{sT0}, 74")
    e(f"s_mul_i32 s{sT1}, s{sC}, 3")
    e(f"s_add_u32 s{sT0}, s{sT0}, s{sT1}")
    e(f"s_add_u32 s{sT0}, s{sT0}, 20")
    e(f"s_lshl_b32 s{sT0}, s{sT0}, 12")
    e(f"s_mul_i32 s{sT1}, s{sWN}, 4608")
    e(f"s_add_u32 s{sST}, s{sT0}, s{sT1}")
    e(f"s_add_u32 s{sST+2}, s{sST}, 4096")
    e(f"s_mul_i32 s{sT1}, s{sWN}, 7680")
    e(f"s_add_u32 s{sST+1}, s{sT0}, s{sT1}")
    e(f"s_add_u32 s{sST+1}, s{sST+1}, 512")
    e("s_nop 7")
    tb = vT + 24
    for mbi in range(2):
        for t in range(3):
            A = ACC + (mbi * 3 + t) * 16
            z = tb; dd = tb + 8; o = tb + 16 + 4 * ((mbi * 3 + t) & 1)
            for j in range(8):
                e(f"v_mul_f32 v{z+j}, v{A+j}, v{A+j}")
            for j in range(8):
                e(f"v_fma_f32 v{z+j}, v{z+j}, v{vC1+mbi}, v{vC0+mbi}")
            for j in range(8):
                e(f"v_mul_f32 v{z+j}, v{z+j}, v{A+j}")
            for j in range(8):
                e(f"v_exp_f32 v{z+j}, v{z+j}")
            for j in range(8):
                e(f"v_mul_f32 v{dd+j}, v{A+j}, v{A+8+j}")
            for j in range(8):
                e(f"v_fma_f32 v{z+j}, v{z+j}, v{vI2+mbi}, v{vI2+mbi}")
            for j in range(8):
                e(f"v_rcp_f32 v{z+j}, v{z+j}")
            e("s_nop 0")
            for j in range(8):
                e(f"v_mul_f32 v{dd+j}, v{dd+j}, v{z+j}")
            for j in range(4):
                e(f"v_cvt_pk_bf16_f32 v{o+j}, v{dd+2*j}, v{dd+2*j+1}")
            e(f"buffer_store_dwordx4 {vr(o,4)}, v{vSA+mbi}, {sr(sWS,4)}, s{sST+t} offen{WT}")
    e(f"s_lshr_b32 s{sT1}, s{sR0}, 3")
    e(f"s_mov_b32 s{sT2}, 32")
    e(f"s_mov_b32 s{sT3}, {FL_OFF}")
    e("s_branch P1_DONE")

    lab("K1_EPI_ATT")
    cm("write q,k,v (bf16) to LDS")
    e("s_barrier")
    vQA = vT + 14
    e(f"s_lshl_b32 s{sT0}, s{sW}, 5")
    e(f"v_add_u32 v{a}, s{sT0}, v{vM}")
    e(f"v_xor_b32 v{b}, 32, v{a}")
    e(f"s_mul_i32 s{sT1}, s{sWN}, 96")
    e(f"v_lshlrev_b32 v{c_}, 4, v{vH}")
    e(f"v_add_u32 v{c_}, s{sT1}, v{c_}")
    e(f"s_movk_i32 s{sT2}, {QP}")
    e(f"v_mad_u32_u24 v{vQA}, v{a}, s{sT2}, v{c_}")
    e(f"v_mad_u32_u24 v{vQA+1}, v{b}, s{sT2}, v{c_}")
    e("s_nop 7")
    tb = vT + 24
    for mbi in range(2):
        for t in range(3):
            A = ACC + (mbi * 3 + t) * 16
            o = tb + 8 * ((mbi * 3 + t) & 1)
            for j in range(16):
                e(f"v_mul_f32 v{A+j}, v{A+j}, v{vR+mbi}")
            for j in range(8):
                e(f"v_cvt_pk_bf16_f32 v{o+j}, v{A+2*j}, v{A+2*j+1}")
            for R in range(2):
                for hh in range(2):
                    e(f"ds_write_b64 v{vQA+mbi}, {vr(o+4*R+2*hh,2)} offset:{192*R + 32*t + 8*hh}")
    cm("attention phase setup")
    vROW, vGR, vQR = vT, vT + 1, vT + 2
    vKR = vT + 4
    vMSK = vT + 8
    vRP = vT + 12
    vD0 = vT + 13
    vD2 = vT + 14
    e(f"v_add_u32 v{vROW}, s{sT0}, v{vM}")
    e(f"v_add_u32 v{vGR}, s{sR0}, v{vROW}")
    e(f"v_mul_u32_u24 v{vQR}, {QP}, v{vROW}")
    e(f"v_lshlrev_b32 v{vT+3}, 3, v{vH}")
    for w_ in range(4):
        e(f"v_add_u32 v{vT+15}, {2*w_}, v{vT+3}")
        e(f"v_sub_u32 v{vKR+w_}, v{vROW}, v{vT+15}")
        e(f"v_max_i32 v{vKR+w_}, 0, v{vKR+w_}")
        e(f"v_mul_u32_u24 v{vKR+w_}, {QP}, v{vKR+w_}")
        e(f"v_cmp_lt_i32 vcc, v{vGR}, v{vT+15}")
        e(f"v_mov_b32 v{vT+16}, {f32(-1e9)}")
        e("s_nop 0")
        e(f"v_cndmask_b32 v{vMSK+w_}, 0, v{vT+16}, vcc")
    e(f"v_lshrrev_b32 v{vT+15}, 6, v{vGR}")
    e(f"v_mul_u32_u24 v{vT+15}, 296, v{vT+15}")
    e(f"v_bfe_u32 v{vT+16}, v{vGR}, 4, 2")
    e(f"v_add_u32 v{vT+15}, v{vT+15}, v{vT+16}")
    e(f"v_lshlrev_b32 v{vT+15}, 10, v{vT+15}")
    e(f"v_and_b32 v{vT+16}, 15, v{vGR}")
    e(f"v_lshl_add_u32 v{vRP}, v{vT+16}, 4, v{vT+15}")
    e(f"v_mul_u32_u24 v{vD0}, 12, v{vH}")
    e(f"v_lshl_add_u32 v{vD2}, v{vH}, 1, 8")
    e(f"v_cmp_le_u32 vcc, 16, v{vROW}")
    e(f"v_cmp_gt_i32 s[{sT2}:{sT3}], 0x800, v{vGR}" if False else f"s_movk_i32 s{sT1}, 0x800")
    e(f"v_cmp_gt_i32 s[{sT2}:{sT3}], s{sT1}, v{vGR}")
    e(f"s_and_b64 s[{sEXM}:{sEXM+1}], vcc, s[{sT2}:{sT3}]")
    e(f"s_mov_b32 s{sI}, 0")
    e(f"s_cmp_eq_u32 s{sC}, 10")
    e(f"s_cselect_b32 s{sMT}, 2, 3")
    e(f"s_mul_i32 s{sST}, s{sC}, 60")
    e(f"s_mov_b32 s{sST+1}, 0x05040100")
    e(f"s_mov_b32 s{sST+2}, 0x07060302")
    e("s_waitcnt lgkmcnt(0)")
    e("s_barrier")
    stamp(4)
    Q, KK, VV, O = 44, 56, 96, 136
    LG = 160; TP = 168; PP = 176
    lab("K1_HEAD")
    for j in range(5):
        e(f"ds_read_b64 {vr(Q+2*j,2)}, v{vQR} offset:{8*j}")
    for w_ in range(4):
        for j in range(5):
            e(f"ds_read_b64 {vr(KK+10*w_+2*j,2)}, v{vKR+w_} offset:{128+8*j}")
    for w_ in range(4):
        for j in range(5):
            e(f"ds_read_b64 {vr(VV+10*w_+2*j,2)}, v{vKR+w_} offset:{256+8*j}")
    for w_ in range(4):
        e(f"v_mov_b32 v{LG+w_}, 0")
    for r in range(20):
        e(f"v_mov_b32 v{O+r}, 0")
    e("s_waitcnt lgkmcnt(15)")
    for j in range(10):
        for w_ in range(4):
            e(f"v_dot2c_f32_bf16 v{LG+w_}, v{Q+j}, v{KK+10*w_+j}")
    e("s_nop 2")
    SC = 20 ** -0.5
    e(f"v_cvt_pk_bf16_f32 v{TP}, v{LG}, v{LG+1}")
    e(f"v_cvt_pk_bf16_f32 v{TP+1}, v{LG+2}, v{LG+3}")
    for w_ in range(4):
        if w_ & 1:
            e(f"v_and_b32 v{LG+w_}, 0xffff0000, v{TP+(w_>>1)}")
        else:
            e(f"v_lshlrev_b32 v{LG+w_}, 16, v{TP+(w_>>1)}")
    for w_ in range(4):
        e(f"v_mul_f32 v{LG+w_}, {f32(SC)}, v{LG+w_}")
    e(f"v_cvt_pk_bf16_f32 v{TP}, v{LG}, v{LG+1}")
    e(f"v_cvt_pk_bf16_f32 v{TP+1}, v{LG+2}, v{LG+3}")
    for w_ in range(4):
        if w_ & 1:
            e(f"v_and_b32 v{LG+w_}, 0xffff0000, v{TP+(w_>>1)}")
        else:
            e(f"v_lshlrev_b32 v{LG+w_}, 16, v{TP+(w_>>1)}")
    for w_ in range(4):
        e(f"v_cmp_gt_f32 vcc, 0, v{vMSK+w_}")
        e("s_nop 1")
        e(f"v_cndmask_b32 v{LG+w_}, v{LG+w_}, v{vMSK+w_}, vcc")
    e(f"v_max_f32 v{TP}, v{LG}, v{LG+1}")
    e(f"v_max3_f32 v{TP}, v{TP}, v{LG+2}, v{LG+3}")
    e(f"v_mov_b32 v{TP+1}, v{TP}")
    e("s_nop 1")
    e(f"v_permlane32_swap_b32 v{TP}, v{TP+1}")
    e("s_nop 1")
    e(f"v_max_f32 v{TP}, v{TP}, v{TP+1}")
    for w_ in range(4):
        e(f"v_sub_f32 v{LG+w_}, v{LG+w_}, v{TP}")
    for w_ in range(4):
        e(f"v_mul_f32 v{LG+w_}, {f32(1.4426950408889634)}, v{LG+w_}")
    for w_ in range(4):
        e(f"v_exp_f32 v{LG+w_}, v{LG+w_}")
    e("s_nop 0")
    e(f"v_add_f32 v{TP}, v{LG}, v{LG+1}")
    e(f"v_add_f32 v{TP+1}, v{LG+2}, v{LG+3}")
    e(f"v_add_f32 v{TP}, v{TP}, v{TP+1}")
    e(f"v_mov_b32 v{TP+1}, v{TP}")
    e("s_nop 1")
    e(f"v_permlane32_swap_b32 v{TP}, v{TP+1}")
    e("s_nop 1")
    e(f"v_add_f32 v{TP}, v{TP}, v{TP+1}")
    e(f"v_rcp_f32 v{TP}, v{TP}")
    e("s_nop 0")
    for w_ in range(4):
        e(f"v_mul_f32 v{LG+w_}, v{LG+w_}, v{TP}")
    e(f"v_cvt_pk_bf16_f32 v{PP}, v{LG}, v{LG+1}")
    e(f"v_cvt_pk_bf16_f32 v{PP+1}, v{LG+2}, v{LG+3}")
    e("s_waitcnt lgkmcnt(0)")
    for j in range(10):
        for wp in range(2):
            v0_, v1_ = VV + 20 * wp + j, VV + 20 * wp + 10 + j
            tl, th = TP + 2 * wp, TP + 2 * wp + 1
            e(f"v_perm_b32 v{tl}, v{v1_}, v{v0_}, s{sST+1}")
            e(f"v_perm_b32 v{th}, v{v1_}, v{v0_}, s{sST+2}")
        for wp in range(2):
            tl, th = TP + 2 * wp, TP + 2 * wp + 1
            e(f"v_dot2c_f32_bf16 v{O+2*j}, v{PP+wp}, v{tl}")
            e(f"v_dot2c_f32_bf16 v{O+2*j+1}, v{PP+wp}, v{th}")
    e("s_nop 3")
    bl = [12, 13, 14, 15, 16, 17, 18, 19, 10, 11]
    for j in range(10):
        e(f"v_permlane32_swap_b32 v{O+j}, v{O+bl[j]}")
    e("s_nop 1")
    for j in range(10):
        e(f"v_add_f32 v{O+j}, v{O+j}, v{O+bl[j]}")
    OUT = 180
    for j in range(5):
        e(f"v_cvt_pk_bf16_f32 v{OUT+j}, v{O+2*j}, v{O+2*j+1}")
    AD = 188
    for s_ in range(3):
        if s_ < 2:
            e(f"v_add_u32 v{TP}, s{sST}, v{vD0}")
            if s_ == 1:
                e(f"v_add_u32 v{TP}, 4, v{TP}")
        else:
            e(f"v_add_u32 v{TP}, s{sST}, v{vD2}")
        e(f"v_lshrrev_b32 v{TP+1}, 5, v{TP}")
        e(f"v_lshl_add_u32 v{AD+s_}, v{TP+1}, 12, v{vRP}")
        e(f"v_bfe_u32 v{TP+1}, v{TP}, 3, 2")
        e(f"v_lshl_add_u32 v{AD+s_}, v{TP+1}, 8, v{AD+s_}")
        e(f"v_and_b32 v{TP+1}, 7, v{TP}")
        e(f"v_lshl_add_u32 v{AD+s_}, v{TP+1}, 1, v{AD+s_}")
    e(f"s_mov_b64 exec, s[{sEXM}:{sEXM+1}]")
    e("s_cbranch_execz K1_NOST")
    e(f"buffer_store_dwordx2 {vr(OUT,2)}, v{AD}, {sr(sWS,4)}, 0 offen{WT}")
    e(f"buffer_store_dwordx2 {vr(OUT+2,2)}, v{AD+1}, {sr(sWS,4)}, 0 offen{WT}")
    e(f"buffer_store_dword v{OUT+4}, v{AD+2}, {sr(sWS,4)}, 0 offen{WT}")
    lab("K1_NOST")
    e(f"s_mov_b64 exec, s[{sFULL}:{sFULL+1}]")
    e(f"v_add_u32 v{vQR}, 40, v{vQR}")
    for w_ in range(4):
        e(f"v_add_u32 v{vKR+w_}, 40, v{vKR+w_}")
    e(f"s_add_u32 s{sST}, s{sST}, 20")
    e(f"s_add_u32 s{sI}, s{sI}, 1")
    e(f"s_cmp_lt_u32 s{sI}, s{sMT}")
    e("s_cbranch_scc1 K1_HEAD")
    e(f"s_add_u32 s{sT1}, s{sR0}, 16")
    e(f"s_add_u32 s{sT2}, s{sR0}, 255")
    e(f"s_min_u32 s{sT2}, s{sT2}, 0x7ff")
    e(f"s_lshr_b32 s{sT1}, s{sT1}, 6")
    e(f"s_lshr_b32 s{sT2}, s{sT2}, 6")
    e(f"s_sub_u32 s{sT2}, s{sT2}, s{sT1}")
    e(f"s_add_u32 s{sT2}, s{sT2}, 1")
    e(f"s_lshl_b32 s{sT1}, s{sT1}, 3")
    e(f"s_lshl_b32 s{sT2}, s{sT2}, 3")
    e(f"s_mov_b32 s{sT3}, {FL_OFF + 4}")
    e("s_branch P1_DONE")

    lab("K1_SPARE")
    sSP = sC
    e(f"s_mov_b32 s{sSP}, s{sT1}")
    e("s_waitcnt lgkmcnt(0)")
    srd(sWA, 28, 640 * 1280)
    srd(sWS, 6, WS_USED)
    e(f"s_cmp_lt_u32 s{sW}, 4")
    srd(sX, 24, 2048 * 1280)
    srd(sSS, 4, 256)
    e(f"s_mov_b32 s{sMT}, 0")
    e(f"s_cmp_lt_u32 s{sW}, 4")
    e("s_cbranch_scc1 K1_SP_NOPF")
    ss_setup()
    pf_setup()
    for i in range(8):
        for q in piece_pf(): e(q)
    ss_compute(8 if OPT["pf"] else 0)
    lab("K1_SP_NOPF")
    e("s_barrier")
    e(f"s_cmp_eq_u32 s{sW}, 4")
    e("s_cbranch_scc0 K1_SP_NOPUB")
    ss_publish()
    e(f"s_and_b32 s{sT1}, s2, 7")
    signal(0, sT1, 0)
    lab("K1_SP_NOPUB")
    srd(sWB, 36, 1728 * 1280)
    vDV = 4
    vRA = 10
    vKY = 11
    vSO = 12
    e(f"s_mul_i32 s{sT0}, s{sW}, 320")
    e(f"s_mov_b32 s{sT1}, 52429")
    e(f"s_movk_i32 s{sT2}, 1280")
    for q in range(5):
        e(f"v_add_u32 v{t0}, s{sT0}, v{vL}")
        if q: e(f"v_add_u32 v{t0}, {64*q}, v{t0}")
        e(f"v_mul_lo_u32 v{t1}, v{t0}, s{sT1}")
        e(f"v_lshrrev_b32 v{t1}, 22, v{t1}")
        e(f"v_mul_u32_u24 v{t2}, 80, v{t1}")
        e(f"v_sub_u32 v{t0}, v{t0}, v{t2}")
        e(f"v_and_b32 v{t2}, 3, v{t1}")
        e(f"v_bfe_u32 v{t3}, v{t1}, 3, 1")
        e(f"v_lshl_add_u32 v{t2}, v{t3}, 2, v{t2}")
        e(f"v_lshlrev_b32 v{t2}, 1, v{t2}")
        e(f"v_xor_b32 v{t0}, v{t0}, v{t2}")
        e(f"v_mul_lo_u32 v{t1}, v{t1}, s{sT2}")
        e(f"v_lshl_add_u32 v{vDV+q}, v{t0}, 4, v{t1}")
    e(f"v_lshrrev_b32 v{t0}, 4, v{vL}")
    e(f"v_bfe_u32 v{t1}, v{vL}, 2, 2")
    e(f"v_lshl_add_u32 v{t2}, v{t0}, 3, v{t1}")
    e(f"v_mul_lo_u32 v{t2}, v{t2}, s{sT2}")
    e(f"v_and_b32 v{t3}, 3, v{vL}")
    e(f"v_lshl_add_u32 v{vRA}, v{t3}, 3, v{t2}")
    e(f"v_and_b32 v{t0}, 1, v{t0}")
    e(f"v_lshl_add_u32 v{t0}, v{t0}, 2, v{t1}")
    e(f"v_lshlrev_b32 v{vKY}, 5, v{t0}")
    e(f"v_lshlrev_b32 v{vSO}, 4, v{vL}")
    e(f"s_mov_b32 s{sI}, 0")
    sKB = sR0
    lab("K1_SP_ROUND")
    for jj in range(3):
        e(f"s_mul_i32 s{sKB}, s{sI}, 39")
        e(f"s_add_u32 s{sKB}, s{sKB}, s{sSP}")
        e(f"s_add_u32 s{sKB}, s{sKB}, {13*jj}")
        e(f"s_cmp_lt_u32 s{sKB}, 74")
        e(f"s_cbranch_scc0 K1_SP_NOLD{jj}")
        e(f"s_mul_i32 s{sXD}, s{sW}, 5120")
        e(f"s_add_u32 s{sXD}, s{sXD}, {40960*jj}")
        e(f"s_cmp_lt_u32 s{sKB}, 20")
        e(f"s_cbranch_scc0 K1_SP_DN{jj}")
        e(f"s_mul_i32 s{sXSO}, s{sKB}, 40960")
        for q in range(5):
            e(f"s_add_u32 m0, s{sXD}, {1024*q}")
            e("s_nop 0")
            e(f"buffer_load_dwordx4 v{vDV+q}, {sr(sWA,4)}, s{sXSO} offen lds")
        e(f"s_branch K1_SP_NOLD{jj}")
        lab(f"K1_SP_DN{jj}")
        e(f"s_sub_u32 s{sXSO}, s{sKB}, 20")
        e(f"s_mul_i32 s{sXSO}, s{sXSO}, 40960")
        for q in range(5):
            e(f"s_add_u32 m0, s{sXD}, {1024*q}")
            e("s_nop 0")
            e(f"buffer_load_dwordx4 v{vDV+q}, {sr(sWB,4)}, s{sXSO} offen lds")
        lab(f"K1_SP_NOLD{jj}")
    e("s_waitcnt vmcnt(0)")
    e("s_barrier")
    for jj in range(3):
        e(f"s_mul_i32 s{sKB}, s{sI}, 39")
        e(f"s_add_u32 s{sKB}, s{sKB}, s{sSP}")
        e(f"s_add_u32 s{sKB}, s{sKB}, {13*jj}")
        e(f"s_cmp_lt_u32 s{sKB}, 74")
        e(f"s_cbranch_scc0 K1_SP_NOST{jj}")
        e(f"s_mul_i32 s{sT0}, s{sW}, 160")
        for j in range(5):
            e(f"s_add_u32 s{sT1}, s{sT0}, {32*j}")
            e(f"v_xad_u32 v{vTA}, v{vKY}, s{sT1}, v{vRA}")
            e(f"ds_read_b64_tr_b16 {vr(24+4*j,2)}, v{vTA} offset:{40960*jj - (40960 if jj==2 else 0)}"
              if jj < 2 else f"v_add_u32 v{vTA}, 40960, v{vTA}")
            if jj == 2:
                e(f"ds_read_b64_tr_b16 {vr(24+4*j,2)}, v{vTA} offset:40960")
                e(f"ds_read_b64_tr_b16 {vr(26+4*j,2)}, v{vTA} offset:{40960+5120}")
            else:
                e(f"ds_read_b64_tr_b16 {vr(26+4*j,2)}, v{vTA} offset:{40960*jj+5120}")
        e(f"s_mul_i32 s{sT0}, s{sW}, 74")
        e(f"s_add_u32 s{sT0}, s{sT0}, s{sKB}")
        e(f"s_mul_i32 s{sT0}, s{sT0}, 5120")
        e(f"s_add_u32 s{sT0}, s{sT0}, {W2_OFF}")
        e(f"s_add_u32 s{sT1}, s{sT0}, 4096")
        e("s_waitcnt lgkmcnt(0)")
        for j in range(4):
            e(f"buffer_store_dwordx4 {vr(24+4*j,4)}, v{vSO}, {sr(sWS,4)}, s{sT0} offen offset:{1024*j}{WT}")
        e(f"buffer_store_dwordx4 {vr(40,4)}, v{vSO}, {sr(sWS,4)}, s{sT1} offen{WT}")
        e("s_nop 1")
        lab(f"K1_SP_NOST{jj}")
    e("s_waitcnt vmcnt(0)")
    e("s_barrier")
    e(f"s_add_u32 s{sI}, s{sI}, 1")
    e(f"s_cmp_lt_u32 s{sI}, 2")
    e("s_cbranch_scc1 K1_SP_ROUND")
    cm("spare WGs must see every flag line zeroed (stats counter complete) before adding")
    srd(sSS, 4, 256)
    e(f"v_and_b32 v34, 7, v{vL}")
    e(f"v_lshlrev_b32 v34, 2, v34")
    e(f"s_mov_b32 s{sT1}, 0")
    lab("K1_SPOLL")
    e(f"buffer_load_dword v35, v34, {sr(sSS,4)}, 0 offen sc1")
    e(f"s_add_u32 s{sT1}, s{sT1}, 1")
    e("s_waitcnt vmcnt(0)")
    e(f"v_cmp_ne_u32 vcc, 32, v35")
    e("s_nop 4")
    e("s_cbranch_vccz K1_SPOLLOK")
    e("s_sleep 16")
    e(f"s_cmp_lt_u32 s{sT1}, 0x4000")
    e("s_cbranch_scc1 K1_SPOLL")
    lab("K1_SPOLLOK")
    e(f"s_mov_b32 s{sT1}, 0")
    e(f"s_movk_i32 s{sT2}, 256")
    e(f"s_mov_b32 s{sT3}, {FL_OFF}")
    lab("P1_DONE")
    e("s_waitcnt vmcnt(0)")
    e("s_barrier")
    cm("signal: thread i < n adds 1 to flag line first+i")
    dstamp(3)
    e(f"v_add_u32 v24, s{sT1}, v0")
    e(f"v_lshlrev_b32 v24, 7, v24")
    e(f"v_mov_b32 v25, 1")
    e(f"v_cmp_gt_u32 vcc, s{sT2}, v0")
    e("s_nop 4")
    e(f"s_mov_b64 exec, vcc")
    e("s_cbranch_execz P1_NOSIG")
    e(f"buffer_atomic_add v25, v24, {sr(sWS,4)}, s{sT3} offen sc1")
    lab("P1_NOSIG")
    e("s_mov_b64 exec, -1")
    stamp_store(0, 6, sWS, sW, 24)
    if OPT["prof"]: e("s_mov_b64 exec, -1")

def k2():
    P = 4
    sX, sWS, sO, sD = 8, 20, 12, 16
    sW, sMT, sNT = 40, 41, 42
    sA, sB = 43, 44
    sT0, sT1, sT2, sT3 = 46, 47, 48, 49
    sA0, sB0 = 50, 51
    vL, vO1, vO2 = 1, 2, 3
    vXO = 4
    vLA = 7
    vT = 10
    vNA, vNB, vPO, vPV = 18, 19, 20, 21
    XR = 22
    ACC = 32
    STG = 112
    cm("================ phase 2: out = x + [o|h] @ [wo; w_down]")
    stamp(0)
    srd(sO, 38, 2048 * 1280)
    e(f"v_lshlrev_b32 v{vO1}, 4, v{vL}")
    e(f"v_add_u32 v{vO2}, 4096, v{vO1}")
    e(f"s_and_b32 s{sT0}, s2, 7")
    e(f"s_lshr_b32 s{sT1}, s2, 3")
    e(f"s_and_b32 s{sMT}, s{sT0}, 3")
    e(f"s_lshl_b32 s{sMT}, s{sMT}, 3")
    e(f"s_and_b32 s{sT2}, s{sT1}, 7")
    e(f"s_add_u32 s{sMT}, s{sMT}, s{sT2}")
    e(f"s_lshr_b32 s{sNT}, s{sT0}, 2")
    e(f"s_lshl_b32 s{sNT}, s{sNT}, 2")
    e(f"s_lshr_b32 s{sT2}, s{sT1}, 3")
    e(f"s_add_u32 s{sNT}, s{sNT}, s{sT2}")
    e(f"s_mul_i32 s{sA0}, s{sMT}, {74*4096}")
    e(f"s_mul_i32 s{sB0}, s{sNT}, {74*5120}")
    e(f"s_add_u32 s{sB0}, s{sB0}, {W2_OFF}")
    sFL, sNB = 52, 53
    e(f"s_lshl_b32 s{sFL}, s{sMT}, 3")
    e(f"s_add_u32 s{sFL}, s{sFL}, s{sNT}")
    e(f"s_lshl_b32 s{sFL}, s{sFL}, 7")
    e(f"s_add_u32 s{sFL}, s{sFL}, {FL_OFF}")
    e(f"v_mov_b32 v{vPO}, 0")
    e(f"s_mul_i32 s{sT0}, s{sMT}, {4*4370}")
    e(f"s_add_u32 s{sT1}, s{sT0}, {3*4370}")
    e(f"s_lshr_b32 s{sT0}, s{sT0}, 16")
    e(f"s_lshr_b32 s{sT1}, s{sT1}, 16")
    e(f"s_cmp_eq_u32 s{sT0}, s{sT1}")
    e(f"s_cselect_b32 s{sNB}, 11, 22")
    for r in range(ACC, ACC + 80):
        e(f"v_mov_b32 v{r}, 0")
    def pload(off):
        e(f"buffer_load_dword v{vPV}, v{vPO}, {sr(sWS,4)}, s{sFL} offen offset:{off} sc1")
    def poll(tag, need, first_wait, off, slp):
        e(f"s_mov_b32 s{sT1}, 0")
        e(f"s_waitcnt vmcnt({first_wait})")
        lab(f"P2_POLL{tag}")
        e(f"v_readfirstlane_b32 s{sT0}, v{vPV}")
        e(f"s_cmp_ge_u32 s{sT0}, {need}")
        e(f"s_cbranch_scc1 P2_OK{tag}")
        e(f"s_sleep {slp}")
        pload(off)
        e(f"s_add_u32 s{sT1}, s{sT1}, 1")
        e(f"s_cmp_lt_u32 s{sT1}, 0x8000")
        e("s_waitcnt vmcnt(0)")
        e(f"s_cbranch_scc1 P2_POLL{tag}")
        lab(f"P2_OK{tag}")
    def kb_of(st):
        if st < 6:
            e(f"s_add_u32 s{sT0}, s{sW}, {20+8*st}")
        elif st == 6:
            e(f"s_add_u32 s{sT0}, s{sW}, 68")
            e(f"s_cmp_lt_u32 s{sW}, 6")
            e(f"s_cselect_b32 s{sT1}, 0, 74")
            e(f"s_sub_u32 s{sT0}, s{sT0}, s{sT1}")
        else:
            e(f"s_add_u32 s{sT0}, s{sW}, {8*st-54}")
            if st == 9: e(f"s_min_u32 s{sT0}, s{sT0}, 19")
    def loadsA(st):
        R = STG + 36 * (st % P)
        kb_of(st)
        e(f"s_lshl_b32 s{sA}, s{sT0}, 12")
        e(f"s_add_u32 s{sA}, s{sA}, s{sA0}")
        for j in range(4):
            e(f"buffer_load_dwordx4 {vr(R+4*j,4)}, v{vO1}, {sr(sWS,4)}, s{sA} offen offset:{1024*j} sc1")
    def loadsB(st):
        R = STG + 36 * (st % P)
        kb_of(st)
        e(f"s_mul_i32 s{sB}, s{sT0}, 5120")
        e(f"s_add_u32 s{sB}, s{sB}, s{sB0}")
        for j in range(4):
            e(f"buffer_load_dwordx4 {vr(R+16+4*j,4)}, v{vO1}, {sr(sWS,4)}, s{sB} offen offset:{1024*j} sc1")
        e(f"buffer_load_dwordx4 {vr(R+32,4)}, v{vO2}, {sr(sWS,4)}, s{sB} offen sc1")
    def mm(st):
        R = STG + 36 * (st % P)
        for j in range(5):
            for mb in range(4):
                a = ACC + (mb * 5 + j) * 4
                e(f"v_mfma_f32_16x16x32_bf16 {vr(a,4)}, {vr(R+16+4*j,4)}, {vr(R+4*mb,4)}, {vr(a,4)}")
    e(f"s_cmp_eq_u32 s{sW}, 7")
    e("s_cbranch_scc0 P2_OKA")
    pload(0)
    poll("A", 31, 0, 0, 2)
    e("s_barrier")
    stamp(1)
    for st in range(4):
        loadsA(st); loadsB(st)
    e(f"s_mov_b32 s{sT0}, 0xcccd")
    e(f"s_mul_i32 s{sT1}, s{sMT}, {64*1280}")
    e(f"s_mul_i32 s{sT2}, s{sNT}, 160")
    e(f"s_add_u32 s{sT1}, s{sT1}, s{sT2}")
    e(f"s_movk_i32 s{sT2}, 1280")
    for i in range(3):
        e(f"v_add_u32 v{vT}, {512*i}, v0")
        e(f"v_mul_lo_u32 v{vT+1}, v{vT}, s{sT0}")
        e(f"v_lshrrev_b32 v{vT+1}, 20, v{vT+1}")
        e(f"v_mul_u32_u24 v{vT+2}, 20, v{vT+1}")
        e(f"v_sub_u32 v{vT}, v{vT}, v{vT+2}")
        e(f"v_bfe_u32 v{vT+3}, v{vT+1}, 1, 2")
        e(f"v_xor_b32 v{vT+3}, v{vT+3}, v{vT}")
        e(f"v_mul_u32_u24 v{vT+2}, 320, v{vT+1}")
        e(f"v_lshl_add_u32 v{vLA+i}, v{vT+3}, 4, v{vT+2}")
        e(f"v_mul_lo_u32 v{vT+1}, v{vT+1}, s{sT2}")
        e(f"v_lshl_add_u32 v{vT+1}, v{vT}, 3, v{vT+1}")
        e(f"v_add_u32 v{vXO+i}, s{sT1}, v{vT+1}")
    e("s_waitcnt vmcnt(27)"); mm(0); loadsA(4); loadsB(4)
    e("s_waitcnt vmcnt(27)"); mm(1); loadsA(5); loadsB(5)
    e("s_waitcnt vmcnt(27)"); mm(2); loadsB(6)
    e("s_waitcnt vmcnt(23)"); mm(3); loadsB(7)
    pload(4)
    e("s_waitcnt vmcnt(20)"); mm(4); loadsB(8)
    e("s_waitcnt vmcnt(16)"); mm(5); loadsB(9)
    poll("B", f"s{sNB}", 10, 4, 8)
    for st in range(6, 10): loadsA(st)
    for i in range(3):
        e(f"buffer_load_dwordx2 {vr(XR+2*i,2)}, v{vXO+i}, {sr(sX,4)}, 0 offen")
    e("s_waitcnt vmcnt(15)"); mm(6)
    e("s_waitcnt vmcnt(11)"); mm(7)
    e("s_waitcnt vmcnt(7)"); mm(8)
    e(f"s_cmp_lt_u32 s{sW}, 2")
    e("s_cbranch_scc0 K2_RED")
    e("s_waitcnt vmcnt(3)"); mm(9)
    lab("K2_RED")
    stamp(2)
    e(f"v_and_b32 v{vT}, 15, v{vL}")
    e(f"v_bfe_u32 v{vT+2}, v{vL}, 1, 2")
    e(f"v_mul_u32_u24 v{vT}, 320, v{vT}")
    e(f"v_lshrrev_b32 v{vT+1}, 4, v{vL}")
    e(f"v_xor_b32 v{vT+1}, v{vT+1}, v{vT+2}")
    e(f"v_lshl_add_u32 v{vT}, v{vT+1}, 4, v{vT}")
    e(f"s_mul_i32 s{sT0}, s{sW}, 20480")
    e(f"v_add_u32 v{vT}, s{sT0}, v{vT}")
    e("s_nop 7")
    for mb in range(4):
        for j in range(5):
            a = ACC + (mb * 5 + j) * 4
            e(f"ds_write_b128 v{vT}, {vr(a,4)} offset:{16*mb*320 + 64*j}")
    e("s_waitcnt lgkmcnt(0)")
    e("s_barrier")
    RB = ACC
    for i in range(3):
        if i == 2:
            e(f"s_cmp_lt_u32 s{sW}, 4")
            e("s_cbranch_scc0 K2_FIN")
        e(f"v_add_u32 v{vT}, 61440, v{vLA+i}")
        e(f"v_add_u32 v{vT+1}, 122880, v{vLA+i}")
        for w_ in range(8):
            ad = (vLA + i, vT, vT + 1)[w_ // 3]
            e(f"ds_read_b128 {vr(RB+4*w_,4)}, v{ad} offset:{(w_ % 3) * 20480}")
        e("s_waitcnt vmcnt(0)" if i == 0 else "s_nop 0")
        b = RB + 32
        e(f"v_lshlrev_b32 v{b}, 16, v{XR+2*i}")
        e(f"v_and_b32 v{b+1}, 0xffff0000, v{XR+2*i}")
        e(f"v_lshlrev_b32 v{b+2}, 16, v{XR+2*i+1}")
        e(f"v_and_b32 v{b+3}, 0xffff0000, v{XR+2*i+1}")
        for w_ in range(0, 8, 2):
            e(f"s_waitcnt lgkmcnt({6-w_})")
            for c in range(4):
                e(f"v_add_f32 v{RB+4*w_+c}, v{RB+4*w_+c}, v{RB+4*w_+4+c}")
        for c in range(4):
            e(f"v_add_f32 v{RB+c}, v{RB+c}, v{RB+8+c}")
            e(f"v_add_f32 v{RB+16+c}, v{RB+16+c}, v{RB+24+c}")
        for c in range(4):
            e(f"v_add_f32 v{RB+c}, v{RB+c}, v{RB+16+c}")
        for c in range(4):
            e(f"v_add_f32 v{RB+c}, v{RB+c}, v{b+c}")
        e(f"v_cvt_pk_bf16_f32 v{b+4+2*i}, v{RB}, v{RB+1}")
        e(f"v_cvt_pk_bf16_f32 v{b+5+2*i}, v{RB+2}, v{RB+3}")
        e(f"buffer_store_dwordx2 {vr(b+4+2*i,2)}, v{vXO+i}, {sr(sO,4)}, 0 offen")
    lab("K2_FIN")
    if OPT["dbgt"]:
        e("s_waitcnt vmcnt(0)")
        dstamp(4)
        e("s_waitcnt lgkmcnt(0)")
        e(f"s_cmp_eq_u32 s{sW}, 0")
        e("s_cbranch_scc0 K1_END")
        e(f"s_mov_b32 s{sT0}, 32")
        e("s_cmp_eq_u32 s2, 0")
        e("s_cbranch_scc1 K2_DW")
        e(f"s_mov_b32 s{sT0}, 48")
        e("s_cmp_eq_u32 s2, 144")
        e("s_cbranch_scc0 K1_END")
        lab("K2_DW")
        srd(sD, 4, 256)
        for i in range(4):
            e(f"s_sub_u32 s{sT1}, s{82+2*i}, s80")
            e(f"v_mov_b32 v{8+i}, s{sT1}")
        e("v_mov_b32 v12, 0")
        e("s_mov_b64 exec, 1")
        e(f"buffer_store_dwordx4 v[8:11], v12, {sr(sD,4)}, s{sT0} offen")
    if OPT["prof"]: e("s_waitcnt vmcnt(0)")
    stamp_store(1, 4, sWS, sW, 8)
    lab("K1_END")
    e("s_endpgm")

hdr = open("cdna_kernels/%s.s.ref" % NAME).read().split("; Override launch")[0]
out = [hdr.rstrip()]
KN = NAME + "_kernel"
out.append(f"; @launch grid=(256,1,1) block=(512,1,1) lds={K1_LDS}")
out.append('.amdgcn_target "amdgcn-amd-amdhsa--gfx950"')
out.append(".text")
out.append(f".globl {KN}\n.type {KN},@function")
out.append(".p2align 8")
k1()
k2()
out += [l.replace("k1_kernel", KN) for l in L]
def kd(name, nv, acc):
    return f""".amdhsa_kernel {name}
  .amdhsa_next_free_vgpr {nv}
  .amdhsa_next_free_sgpr 102
  .amdhsa_accum_offset {acc}
  .amdhsa_group_segment_fixed_size 0
  .amdhsa_kernarg_size 80
  .amdhsa_user_sgpr_count 2
  .amdhsa_user_sgpr_kernarg_segment_ptr 1
  .amdhsa_system_sgpr_workgroup_id_x 1
.end_amdhsa_kernel"""
out.append('.section .rodata,"a"')
out.append(".p2align 6")
out.append(kd(KN, 256, 256))
open(sys.argv[1], "w").write("\n".join(out) + "\n")
```

```python
import sys, struct

NAME = "parallel_sum__sliding_local_dilated__glu_gated_geglu__prompt"
OPT = dict(fair=0, fake=0, p2sc=3, stats=0, k2_P=4, prof=0, wt=3, pf=0, slp=16, dbgt=0, pfd=3, rpg=2, trplain=0, nobar=0, prio=0, noadv=0, nodma=0, nomfma=0, nolds=0)
for a in sys.argv[2:]:
    k, v = a.split("=")
    OPT[k] = int(v)

L = []
WT = ['', ' sc0 sc1', ' nt', ' sc1', ' sc0 sc1 nt'][OPT['wt']]
def e(s): L.append("    " + s)
def lab(s): L.append(s + ":")
def cm(s): L.append("    ; " + s)
def f32(x): return "0x%08x" % struct.unpack("<I", struct.pack("<f", x))[0]
def vr(a, n): return "v[%d:%d]" % (a, a + n - 1)
def sr(a, n): return "s[%d:%d]" % (a, a + n - 1)

A2_BYTES = 32 * 74 * 4096
W2_OFF = 0xA00000
W2_BYTES = 8 * 74 * 5120
WS_USED = W2_OFF + W2_BYTES
CS_OFF = WS_USED
RS_OFF = CS_OFF + 3 * 5504 * 4
FL_OFF = RS_OFF + 2048 * 8
WS_USED = FL_OFF + 256 * 128
LS = 160064
PROF_OFF = 0x2000000
if OPT['prof']: WS_USED = PROF_OFF + 0x100000

XSLOT = 32768
WBASE = 3 * XSLOT
WREGB = 6176
WSLOT = 12352
EX = 102400
EXC = EX + 2048
QP = 392
K1_LDS = 163840

def srd(d, b, nbytes):
    e(f"s_mov_b32 s{d}, s{b}")
    e(f"s_and_b32 s{d+1}, s{b+1}, 0xffff")
    e(f"s_mov_b32 s{d+2}, {nbytes}")
    e(f"s_mov_b32 s{d+3}, 0x00020000")

def dstamp(i):
    if OPT["dbgt"]: e(f"s_memrealtime s[{80+2*i}:{81+2*i}]")
def stamp(i):
    if OPT["prof"]:
        e(f"s_memrealtime s[{80+2*i}:{81+2*i}]")
        if i == 1: e("s_memtime s[92:93]")
        if i == 2: e("s_memtime s[76:77]")
def tick(r):
    if OPT["prof"]:
        e(f"s_memtime s[98:99]"); e("s_waitcnt lgkmcnt(0)"); e(f"s_sub_u32 s{r}, 0, s98")
def tock(r):
    if OPT["prof"]:
        e(f"s_memtime s[98:99]"); e("s_waitcnt lgkmcnt(0)"); e(f"s_add_u32 s{r}, s{r}, s98")
def stamp_store(kidx, n, sWS, sW, vt):
    if not OPT["prof"]: return
    e(f"s_memrealtime s[{80+2*(n-1)}:{81+2*(n-1)}]")
    e("s_waitcnt lgkmcnt(0)")
    e(f"s_lshl_b32 s94, s2, 3")
    e(f"s_add_u32 s94, s94, s{sW}")
    e(f"s_lshl_b32 s94, s94, 5")
    e(f"s_add_u32 s94, s94, {PROF_OFF + kidx*0x40000}")
    e(f"v_mov_b32 v{vt+8}, 0")
    for i in range(n):
        e(f"v_mov_b32 v{vt+i}, s{80+2*i}")
    for i in range(n, 8):
        e(f"v_mov_b32 v{vt+i}, 0")
    e(f"s_sub_u32 s92, s76, s92")
    e(f"v_mov_b32 v{vt+7}, s92")
    e(f"v_mov_b32 v{vt+6}, s96")
    if n < 6: e(f"v_mov_b32 v{vt+5}, s97")
    e("s_mov_b64 exec, 1")
    e(f"buffer_store_dwordx4 {vr(vt,4)}, v{vt+8}, {sr(sWS,4)}, s94 offen")
    e(f"buffer_store_dwordx4 {vr(vt+4,4)}, v{vt+8}, {sr(sWS,4)}, s94 offen offset:16")

def k1():
    sX, sWA, sWB, sWS = 8, 12, 16, 20
    sW, sWM, sWN, sROT = 40, 41, 42, 43
    sTYPE, sC, sR0, sPITCH = 44, 45, 46, 47
    sJ, sOB, sCOLB = 48, 49, 50
    sI = 51
    sXSO, sWSO, sWSTEP = 52, 53, 54
    sXD, sWD = 55, 56
    sXR, sWR = 57, 58
    sT0, sT1, sT2, sT3 = 60, 61, 62, 63
    sEXM = 64
    sONE = 66
    sFULL = 68
    sST = 70
    sMT = 73
    vL, vM, vH = 1, 2, 3
    vXV = 72
    vWVA, vWVB = 8, 9
    vXB, vWA0, vWA1 = 10, 11, 12
    vTA = 13
    vXB0, vWB0, vWB1 = 21, 22, 23
    vS1, vS2 = 14, 16
    vCS = 18
    vT = 24
    FA, FB = 88, 108
    ACC = 128

    vWV, vPF, vDUM = 80, 83, 84
    sMAXR, sPFS = 74, 75
    sPF = sWB
    def piece_x(i):
        r = []
        if i == 0: r.append(f"s_mov_b32 m0, s{sXD}")
        else: r.append(f"s_add_u32 m0, s{sXD}, {1024*i}")
        r.append("s_nop 0")
        r.append(f"buffer_load_dwordx4 v{vXV+i}, {sr(sX,4)}, s{sXSO} offen lds")
        if i == 7:
            r += [f"s_add_u32 s{sXD}, s{sXD}, {XSLOT}", f"s_add_u32 s{sXSO}, s{sXSO}, {0 if OPT['noadv'] else 128}",
                  f"s_cmp_ge_u32 s{sXD}, {3*XSLOT}", f"s_cselect_b32 s{sT0}, {3*XSLOT}, 0",
                  f"s_sub_u32 s{sXD}, s{sXD}, s{sT0}"]
        return r
    def piece_w(i):
        r = []
        if i == 0: r.append(f"s_mov_b32 m0, s{sWD}")
        else: r.append(f"s_add_u32 m0, s{sWD}, {1024*i}")
        r.append("s_nop 0")
        r.append(f"buffer_load_dwordx4 v{vWV+i}, {sr(sWA,4)}, s{sWSO} offen lds")
        if i == 2:
            r += [f"s_add_u32 s{sWD}, s{sWD}, {WSLOT}",
                f"s_add_u32 s{sWSO}, s{sWSO}, 0" if OPT['noadv'] else f"s_add_u32 s{sWSO}, s{sWSO}, s{sWSTEP}",
                f"s_cmp_ge_u32 s{sWD}, {WBASE + 5*WSLOT}",
                f"s_cselect_b32 s{sT0}, {5*WSLOT}, 0",
                f"s_sub_u32 s{sWD}, s{sWD}, s{sT0}"]
        return r
    def piece_pf():
        if not OPT["pf"]: return []
        return [f"buffer_load_dword v{vDUM}, v{vPF}, {sr(sPF,4)}, s{sXSO} offen",
                f"s_add_u32 s{sXSO}, s{sXSO}, s{sPFS}"]
    def pf_setup():
        t0, t1, t2, t3 = 64, 65, 66, 67
        e(f"s_and_b32 s{sT0}, s2, 7")
        e(f"s_lshr_b32 s{sT1}, s2, 3")
        e(f"s_and_b32 s{sT2}, s{sT0}, 1")
        e(f"s_lshr_b32 s{sT3}, s{sT0}, 1")
        e(f"s_cmp_eq_u32 s{sW}, 4")
        e(f"s_cbranch_scc0 K1_PF_W{pf_setup.n}")
        srd(sPF, 24, 2048 * 1280)
        e(f"s_lshl_b32 s{sT2}, s{sT2}, 10")
        e(f"s_mul_i32 s{sT1}, s{sT1}, 40")
        e(f"s_add_u32 s{sT1}, s{sT1}, s{sT2}")
        e(f"v_add_u32 v{t0}, s{sT1}, v{vL}")
        e(f"v_mul_u32_u24 v{vPF}, 1280, v{t0}")
        e(f"v_cmp_gt_u32 vcc, 40, v{vL}")
        e(f"s_movk_i32 s{sPFS}, 128")
        e(f"s_movk_i32 s{sXSO}, 256")
        e(f"s_branch K1_PF_E{pf_setup.n}")
        lab(f"K1_PF_W{pf_setup.n}")
        e(f"s_cmp_eq_u32 s{sW}, 7")
        e(f"s_cbranch_scc1 K1_PF_Q{pf_setup.n}")
        e(f"s_cmp_eq_u32 s{sW}, 5")
        e(f"s_cselect_b32 s{sPF}, s32, s34")
        e(f"s_cselect_b32 s{sPF+1}, s33, s35")
        srd(sPF, sPF, 640 * 1728 * 2)
        e(f"s_mul_i32 s{sT3}, s{sT3}, 18")
        e(f"s_lshr_b32 s{sT3}, s{sT3}, 2")
        e(f"s_mul_i32 s{sT3}, s{sT3}, 192")
        e(f"s_mul_i32 s{sT1}, s{sT1}, 6912")
        e(f"s_add_u32 s{sT1}, s{sT1}, s{sT3}")
        e(f"v_lshrrev_b32 v{t0}, 4, v{vL}")
        e(f"v_and_b32 v{t1}, 15, v{vL}")
        e(f"v_mul_u32_u24 v{t2}, 3456, v{t0}")
        e(f"v_lshl_add_u32 v{t2}, v{t1}, 7, v{t2}")
        e(f"v_add_u32 v{vPF}, s{sT1}, v{t2}")
        e(f"v_lshl_add_u32 v{t0}, v{t0}, 3, v{t1}")
        e(f"v_cmp_gt_u32 vcc, 8, v{t1}")
        e(f"v_cmp_gt_u32 s[{sT2}:{sT3}], 32, v{vL}")
        e(f"s_and_b64 vcc, vcc, s[{sT2}:{sT3}]")
        e(f"s_mov_b32 s{sPFS}, {64*3456}")
        e(f"s_mov_b32 s{sXSO}, {128*3456}")
        e(f"s_branch K1_PF_E{pf_setup.n}")
        lab(f"K1_PF_Q{pf_setup.n}")
        srd(sPF, 26, 640 * 1920 * 2)
        e(f"s_mul_i32 s{sT3}, s{sT3}, 14")
        e(f"s_mul_i32 s{sT0}, s{sT3}, 205")
        e(f"s_lshr_b32 s{sT0}, s{sT0}, 10")
        e(f"s_lshr_b32 s{sT3}, s{sT3}, 2")
        e(f"s_cmp_eq_u32 s{sT2}, 0")
        e(f"s_cselect_b32 s{sT3}, s{sT0}, s{sT3}")
        e(f"s_mul_i32 s{sT3}, s{sT3}, 120")
        e(f"s_mul_i32 s{sT1}, s{sT1}, 7680")
        e(f"s_add_u32 s{sT1}, s{sT1}, s{sT3}")
        e(f"v_lshrrev_b32 v{t0}, 3, v{vL}")
        e(f"v_and_b32 v{t1}, 7, v{vL}")
        e(f"v_mul_u32_u24 v{t2}, 1280, v{t0}")
        e(f"v_lshl_add_u32 v{t2}, v{t1}, 7, v{t2}")
        e(f"v_add_u32 v{vPF}, s{sT1}, v{t2}")
        e(f"v_cmp_gt_u32 vcc, 5, v{t1}")
        e(f"v_cmp_gt_u32 s[{sT2}:{sT3}], 48, v{vL}")
        e(f"s_and_b64 vcc, vcc, s[{sT2}:{sT3}]")
        e(f"s_mov_b32 s{sPFS}, {64*3840}")
        e(f"s_mov_b32 s{sXSO}, {128*3840}")
        lab(f"K1_PF_E{pf_setup.n}")
        e(f"v_mov_b32 v{t0}, 0x7f000000")
        e(f"v_cndmask_b32 v{vPF}, v{t0}, v{vPF}, vcc")
        pf_setup.n += 1
    pf_setup.n = 0

    sSS = 76
    vSL, vSR, vAC = 24, 52, 64
    def ss_setup():
        t0, t1, t2 = 64, 65, 66
        e(f"s_mul_i32 s{sT0}, s2, 171")
        e(f"s_lshr_b32 s{sT0}, s{sT0}, 9")
        e(f"s_mul_i32 s{sT1}, s{sT0}, 3")
        e(f"s_sub_u32 s{sT1}, s2, s{sT1}")
        e(f"s_mul_i32 s{sMT}, s{sT1}, 5504")
        e(f"s_lshl_b32 s{sT2}, s{sT0}, 6")
        e(f"s_add_u32 s{sMT}, s{sMT}, s{sT2}")
        e(f"s_lshl_b32 s{sMT}, s{sMT}, 2")
        e(f"s_add_u32 s{sMT}, s{sMT}, {CS_OFF}")
        e(f"s_movk_i32 s{sT2}, 3456")
        e(f"s_mov_b32 s{sSS+2}, {640*1728*2}")
        e(f"s_cmp_lt_u32 s{sT0}, 27")
        e(f"s_cselect_b32 s{sSS}, s32, s34")
        e(f"s_cselect_b32 s{sSS+1}, s33, s35")
        e(f"s_cselect_b32 s{sT3}, 0, 27")
        e(f"s_cmp_lt_u32 s{sT0}, 54")
        e(f"s_cselect_b32 s{sSS}, s{sSS}, s26")
        e(f"s_cselect_b32 s{sSS+1}, s{sSS+1}, s27")
        e(f"s_cselect_b32 s{sT3}, s{sT3}, 54")
        e(f"s_cselect_b32 s{sT2}, s{sT2}, 3840")
        e(f"s_cselect_b32 s{sSS+2}, s{sSS+2}, {640*1920*2}")
        e(f"s_and_b32 s{sSS+1}, s{sSS+1}, 0xffff")
        e(f"s_mov_b32 s{sSS+3}, 0x00020000")
        e(f"s_sub_u32 s{sT0}, s{sT0}, s{sT3}")
        e(f"s_lshl_b32 s{sT0}, s{sT0}, 7")
        e(f"s_mul_i32 s{sT1}, s{sT1}, 224")
        e(f"s_lshl_b32 s{sT3}, s{sW}, 3")
        e(f"s_add_u32 s{sT1}, s{sT1}, s{sT3}")
        e(f"s_sub_u32 s{sT1}, s{sT1}, 32")
        e(f"v_lshrrev_b32 v{t0}, 3, v{vL}")
        e(f"v_add_u32 v{t0}, s{sT1}, v{t0}")
        e(f"v_mul_lo_u32 v{t0}, v{t0}, s{sT2}")
        e(f"v_and_b32 v{t1}, 7, v{vL}")
        e(f"v_lshl_add_u32 v{t0}, v{t1}, 4, v{t0}")
        e(f"s_lshl_b32 s{sT2}, s{sT2}, 5")
        for i in range(7):
            e(f"buffer_load_dwordx4 {vr(vSL+4*i,4)}, v{t0}, {sr(sSS,4)}, s{sT0} offen")
            if i < 6: e(f"s_add_u32 s{sT0}, s{sT0}, s{sT2}")
        e(f"s_lshl_b32 s{sT0}, s2, 2")
        e(f"s_add_u32 s{sT0}, s{sT0}, s{sW}")
        e(f"s_sub_u32 s{sT0}, s{sT0}, 4")
        e(f"s_mul_i32 s{sT0}, s{sT0}, 2560")
        e(f"v_mul_u32_u24 v{t1}, 1280, v{vH}")
        e(f"v_lshl_add_u32 v{t1}, v{vM}, 4, v{t1}")
        e(f"v_lshrrev_b32 v{t2}, 4, v{vM}")
        e(f"v_lshl_add_u32 v{t2}, v{t2}, 30, v{t1}")
        e(f"buffer_load_dwordx4 {vr(vSR,4)}, v{t1}, {sr(sX,4)}, s{sT0} offen")
        e(f"buffer_load_dwordx4 {vr(vSR+4,4)}, v{t1}, {sr(sX,4)}, s{sT0} offen offset:512")
        e(f"buffer_load_dwordx4 {vr(vSR+8,4)}, v{t2}, {sr(sX,4)}, s{sT0} offen offset:1024")
    def ss_compute(nafter):
        a, b, c_, d = vS1, vS1 + 1, vS2, vS2 + 1
        t = vCS
        e(f"s_lshl_b32 s{sT0}, s{sW}, 8")
        e(f"s_add_u32 s{sT0}, s{sT0}, {LS - 1024}")
        e(f"s_mov_b32 s{sONE}, 0x3f803f80")
        for r in (a, b, c_, d): e(f"v_mov_b32 v{r}, 0")
        e(f"s_waitcnt vmcnt({nafter})")
        for q in range(4):
            e(f"v_lshlrev_b32 v{vAC+2*q}, 16, v{vSL+q}")
            e(f"v_and_b32 v{vAC+2*q+1}, 0xffff0000, v{vSL+q}")
        for i in range(1, 7):
            for q in range(4):
                r = vSL + 4 * i + q
                e(f"v_lshlrev_b32 v{t+1}, 16, v{r}")
                e(f"v_and_b32 v{r}, 0xffff0000, v{r}")
                e(f"v_add_f32 v{vAC+2*q}, v{vAC+2*q}, v{t+1}")
                e(f"v_add_f32 v{vAC+2*q+1}, v{vAC+2*q+1}, v{r}")
        e(f"v_and_b32 v{t+1}, 7, v{vL}")
        e(f"v_lshl_add_u32 v{t}, v{t+1}, 5, s{sT0}")
        e(f"v_lshrrev_b32 v{t+1}, 4, v{vL}")
        e(f"v_lshl_add_u32 v{t}, v{t+1}, 3, v{t}")
        for q in range(4): e(f"v_permlane32_swap_b32 v{vAC+q}, v{vAC+q+4}")
        e("s_nop 1")
        for q in range(4): e(f"v_add_f32 v{vAC+q}, v{vAC+q}, v{vAC+q+4}")
        e("s_nop 1")
        for q in range(2): e(f"v_permlane16_swap_b32 v{vAC+q}, v{vAC+q+2}")
        e("s_nop 1")
        for q in range(2): e(f"v_add_f32 v{vAC+q}, v{vAC+q}, v{vAC+q+2}")
        e("s_nop 1")
        for q in range(2): e(f"v_add_f32_dpp v{vAC+q}, v{vAC+q}, v{vAC+q} row_ror:8 row_mask:0xf bank_mask:0xf")
        e(f"ds_write_b64 v{t}, {vr(vAC,2)}")
        for q in range(12):
            e(f"v_dot2c_f32_bf16 v{(a,b)[q&1]}, s{sONE}, v{vSR+q}")
            e(f"v_dot2c_f32_bf16 v{(c_,d)[q&1]}, v{vSR+q}, v{vSR+q}")
        e("s_nop 2")
        e(f"v_add_f32 v{a}, v{a}, v{b}")
        e(f"v_add_f32 v{c_}, v{c_}, v{d}")
        for dpp in ("quad_perm:[1,0,3,2]", "quad_perm:[2,3,0,1]", "row_half_mirror", "row_mirror"):
            e("s_nop 1")
            e(f"v_add_f32_dpp v{a}, v{a}, v{a} {dpp} row_mask:0xf bank_mask:0xf")
            e(f"v_add_f32_dpp v{c_}, v{c_}, v{c_} {dpp} row_mask:0xf bank_mask:0xf")
        e(f"v_mov_b32 v{b}, v{a}")
        e(f"v_mov_b32 v{d}, v{c_}")
        e("s_nop 1")
        e(f"v_permlane16_swap_b32 v{a}, v{b}")
        e(f"v_permlane16_swap_b32 v{c_}, v{d}")
        e("s_nop 1")
        e(f"v_add_f32 v{a}, v{a}, v{b}")
        e(f"v_add_f32 v{c_}, v{c_}, v{d}")
        e(f"v_mul_f32 v{a}, {f32(1.0/640)}, v{a}")
        e(f"v_mul_f32 v{c_}, {f32(1.0/640)}, v{c_}")
        e(f"v_fma_f32 v{c_}, -v{a}, v{a}, v{c_}")
        e(f"v_max_f32 v{c_}, 0, v{c_}")
        e(f"v_cvt_pk_bf16_f32 v{a}, v{a}, v{a}")
        e(f"v_cvt_pk_bf16_f32 v{c_}, v{c_}, v{c_}")
        e(f"v_and_b32 v{c_}, 0xffff0000, v{c_}")
        e(f"v_add_f32 v{c_}, {f32(1e-5)}, v{c_}")
        e(f"v_cvt_pk_bf16_f32 v{c_}, v{c_}, v{c_}")
        e(f"v_and_b32 v{c_}, 0xffff0000, v{c_}")
        e(f"v_sqrt_f32 v{c_}, v{c_}")
        e(f"s_lshl_b32 s{sT0}, s{sW}, 4")
        e(f"s_add_u32 s{sT0}, s{sT0}, {LS + 1024 - 64}")
        e(f"v_cvt_pk_bf16_f32 v{c_}, v{c_}, v{c_}")
        e(f"v_and_b32 v{b}, 0xffff0000, v{c_}")
        e(f"v_lshl_add_u32 v{t}, v{vH}, 3, s{sT0}")
        e(f"ds_write_b64 v{t}, {vr(a,2)}")
        e("s_waitcnt lgkmcnt(0)")
    def ss_publish():
        t = vSL
        e(f"v_lshlrev_b32 v{t}, 2, v{vL}")
        e(f"v_add_u32 v{t+1}, {LS}, v{t}")
        for q in range(4):
            e(f"ds_read_b32 v{t+2+q}, v{t+1} offset:{256*q}")
        e(f"ds_read_b32 v{t+6}, v{t+1} offset:1024")
        e(f"v_lshrrev_b32 v{t+7}, 4, v{vL}")
        e(f"v_min_u32 v{t+7}, 1, v{t+7}")
        e(f"v_lshl_add_u32 v{t+7}, v{t+7}, 30, v{t}")
        e(f"s_lshl_b32 s{sT0}, s2, 6")
        e(f"s_add_u32 s{sT0}, s{sT0}, {RS_OFF}")
        e("s_waitcnt lgkmcnt(0)")
        e(f"v_add_f32 v{t+2}, v{t+2}, v{t+3}")
        e(f"v_add_f32 v{t+4}, v{t+4}, v{t+5}")
        e(f"v_add_f32 v{t+2}, v{t+2}, v{t+4}")
        e(f"buffer_store_dword v{t+2}, v{t}, {sr(sWS,4)}, s{sMT} offen sc1")
        e(f"buffer_store_dword v{t+6}, v{t+7}, {sr(sWS,4)}, s{sT0} offen sc1")
        e(f"s_lshl_b32 s{sT0}, s2, 7")
        e(f"s_add_u32 s{sT0}, s{sT0}, {FL_OFF}")
        e(f"v_mov_b32 v{t+3}, 0")
        e(f"buffer_store_dword v{t+3}, v{t+7}, {sr(sWS,4)}, s{sT0} offen sc1")
    def signal(nafter, idx_s, base):
        t = vSL + 8
        srd(sSS, 4, 256)
        e(f"s_lshl_b32 s{sT0}, s{idx_s}, 2")
        e(f"v_mov_b32 v{t}, {4*base}")
        e(f"v_mov_b32 v{t+1}, 1")
        e(f"s_waitcnt vmcnt({nafter})")
        e("s_mov_b64 exec, 1")
        e(f"buffer_atomic_add v{t+1}, v{t}, {sr(sSS,4)}, s{sT0} offen sc1")
        e("s_mov_b64 exec, -1")

    lab(f"k1_kernel")
    e("s_cmp_ge_u32 s2, 256")
    e("s_cbranch_scc1 K1_END")
    stamp(0); dstamp(0)
    e("s_load_dwordx4 s[24:27], s[0:1], 0")
    e("s_load_dwordx2 s[28:29], s[0:1], 16")
    e("s_load_dwordx4 s[32:35], s[0:1], 32")
    e("s_load_dwordx4 s[36:39], s[0:1], 48")
    e("s_load_dwordx4 s[4:7], s[0:1], 64")
    e(f"v_lshrrev_b32 v{vT}, 6, v0")
    e(f"v_and_b32 v{vL}, 63, v0")
    e(f"v_readfirstlane_b32 s{sW}, v{vT}")
    e(f"v_and_b32 v{vM}, 31, v0")
    e(f"v_bfe_u32 v{vH}, v0, 5, 1")
    cm("role decode")
    e(f"s_movk_i32 s{sMAXR}, 0x7ff")
    e(f"s_and_b32 s{sT0}, s2, 7")
    e(f"s_lshr_b32 s{sT1}, s2, 3")
    e(f"s_and_b32 s{sT2}, s{sT0}, 1")
    e(f"s_lshr_b32 s{sT3}, s{sT0}, 1")
    e(f"s_lshr_b32 s{sWM}, s{sW}, 1")
    e(f"s_and_b32 s{sWN}, s{sW}, 1")
    e(f"s_and_b32 s{sROT}, s{sWM}, 1")
    e(f"s_cmp_lt_u32 s{sT1}, 18")
    e("s_cbranch_scc0 K1_NOTFF")
    cm("ff")
    e(f"s_mul_i32 s{sT0}, s{sT3}, 18")
    e(f"s_add_u32 s{sT0}, s{sT0}, s{sT1}")
    e(f"s_lshr_b32 s{sC}, s{sT0}, 2")
    e(f"s_and_b32 s{sT0}, s{sT0}, 3")
    e(f"s_lshl_b32 s{sT2}, s{sT2}, 2")
    e(f"s_add_u32 s{sT0}, s{sT0}, s{sT2}")
    e(f"s_lshl_b32 s{sR0}, s{sT0}, 8")
    e(f"s_mov_b32 s{sTYPE}, 0")
    e(f"s_movk_i32 s{sPITCH}, 3456")
    e(f"s_mov_b32 s{sJ}, 0")
    e(f"s_mov_b32 s{sOB}, 0")
    e(f"s_mul_i32 s{sCOLB}, s{sC}, 192")
    e("s_waitcnt lgkmcnt(0)")
    srd(sWA, 32, 640 * 1728 * 2)
    srd(sWB, 34, 640 * 1728 * 2)
    e("s_branch K1_COMMON")
    lab("K1_NOTFF")
    e(f"s_mul_i32 s{sT0}, s{sT3}, 14")
    e(f"s_add_u32 s{sT0}, s{sT0}, s{sT1}")
    e(f"s_sub_u32 s{sT0}, s{sT0}, 18")
    e(f"s_cmp_eq_u32 s{sT2}, 0")
    e("s_cbranch_scc0 K1_MH1")
    e(f"s_mov_b32 s{sT1}, 0")
    e(f"s_cmp_lt_u32 s{sT0}, 55")
    e("s_cbranch_scc0 K1_SPARE")
    e(f"s_mul_i32 s{sC}, s{sT0}, 205")
    e(f"s_lshr_b32 s{sC}, s{sC}, 10")
    e(f"s_mul_i32 s{sT1}, s{sC}, 5")
    e(f"s_sub_u32 s{sT1}, s{sT0}, s{sT1}")
    e("s_branch K1_ATT")
    lab("K1_MH1")
    e(f"s_sub_u32 s{sT1}, s{sT0}, 43")
    e(f"s_cmp_lt_u32 s{sT0}, 44")
    e("s_cbranch_scc0 K1_SPARE")
    e(f"s_lshr_b32 s{sC}, s{sT0}, 2")
    e(f"s_and_b32 s{sT1}, s{sT0}, 3")
    e(f"s_add_u32 s{sT1}, s{sT1}, 5")
    lab("K1_ATT")
    e(f"s_mul_i32 s{sR0}, s{sT1}, 240")
    e(f"s_sub_u32 s{sR0}, s{sR0}, 16")
    e(f"s_mov_b32 s{sTYPE}, 1")
    e(f"s_movk_i32 s{sPITCH}, 3840")
    e(f"s_movk_i32 s{sJ}, 1152")
    e(f"s_movk_i32 s{sOB}, 1344")
    e(f"s_mul_i32 s{sCOLB}, s{sC}, 120")
    e("s_waitcnt lgkmcnt(0)")
    srd(sWA, 26, 640 * 1920 * 2)
    srd(sWB, 26, 640 * 1920 * 2)
    lab("K1_COMMON")
    srd(sX, 24, 2048 * 1280)
    srd(sWS, 6, WS_USED)
    t0, t1, t2, t3, t4 = vT, vT + 1, vT + 2, vT + 3, vT + 4
    e(f"s_mov_b32 s{sXSO}, 0")
    e(f"s_mov_b32 s{sWSO}, 0")
    e(f"s_cmp_lt_u32 s{sW}, 4")
    e("s_cbranch_scc0 K1_PFSETUP")
    cm("x dma voffsets (waves 0-3: rows 64w..64w+63)")
    e(f"v_lshrrev_b32 v{t0}, 3, v{vL}")
    e(f"v_and_b32 v{t1}, 7, v{vL}")
    e(f"v_bfe_u32 v{t3}, v{t0}, 1, 2")
    e(f"v_xor_b32 v{t3}, v{t3}, v{t1}")
    e(f"v_lshlrev_b32 v{t3}, 4, v{t3}")
    e(f"v_xor_b32 v{t4}, 64, v{t3}")
    e(f"s_lshl_b32 s{sT0}, s{sW}, 6")
    e(f"s_add_i32 s{sT0}, s{sT0}, s{sR0}")
    e(f"s_movk_i32 s{sT1}, 1280")
    e(f"v_add_u32 v{t0}, s{sT0}, v{t0}")
    e(f"s_lshl_b32 s{sXD}, s{sW}, 13")
    for i in range(8):
        e(f"v_add_u32 v{t2}, {8*i}, v{t0}")
        e(f"v_med3_i32 v{t2}, v{t2}, 0, s{sMAXR}")
        e(f"v_mad_u32_u24 v{vXV+i}, v{t2}, s{sT1}, v{t4 if i&1 else t3}")
    for i in range(8):
        for q in piece_x(i): e(q)
    cm("W dma voffsets: piece p=3w+i ; region=w>>1 ; lin=(p%6)*1024+l*16")
    e(f"s_and_b32 s{sT0}, s{sW}, 1")
    e(f"s_mul_i32 s{sT0}, s{sT0}, 192")
    e(f"s_lshr_b32 s{sT2}, s{sW}, 1")
    e(f"s_mul_i32 s{sWD}, s{sT2}, {WREGB}")
    e(f"s_lshl_b32 s{sT3}, s{sT0}, 4")
    e(f"s_add_u32 s{sWD}, s{sWD}, s{sT3}")
    e(f"s_add_u32 s{sWD}, s{sWD}, {WBASE}")
    e(f"s_mul_i32 s{sT3}, s{sT2}, s{sOB}")
    e(f"s_add_u32 s{sCOLB}, s{sCOLB}, s{sT3}")
    e(f"s_lshr_b32 s{sT3}, 8, s{sT2}")
    e(f"s_cmp_eq_u32 s{sT2}, 0")
    e(f"s_cselect_b32 s{sWA}, s{sWA}, s{sWB}")
    e(f"s_cselect_b32 s{sWA+1}, s{sWA+1}, s{sWB+1}")
    e(f"s_lshl_b32 s{sWSTEP}, s{sPITCH}, 5")
    e(f"v_mov_b32 v{t4}, s{sJ}")
    for i in range(3):
        e(f"v_add_u32 v{t0}, s{sT0}, v{vL}")
        if i: e(f"v_add_u32 v{t0}, {64*i}, v{t0}")
        e(f"v_mul_u32_u24 v{t1}, 0xaab, v{t0}")
        e(f"v_lshrrev_b32 v{t1}, 15, v{t1}")
        e(f"v_mul_u32_u24 v{t2}, 12, v{t1}")
        e(f"v_sub_u32 v{t0}, v{t0}, v{t2}")
        e(f"v_cmp_le_u32 vcc, s{sT3}, v{t0}")
        e(f"v_mul_lo_u32 v{t1}, v{t1}, s{sPITCH}")
        e(f"v_lshl_add_u32 v{t1}, v{t0}, 4, v{t1}")
        e(f"v_cndmask_b32 v{t2}, 0, v{t4}, vcc")
        e(f"v_add3_u32 v{vWV+i}, v{t1}, v{t2}, s{sCOLB}")
    for r in range(2):
        for i in range(3):
            for q in piece_w(i): e(q)
    for i in range(8):
        for q in piece_x(i): e(q)
    for r in range(2):
        for i in range(3):
            for q in piece_w(i): e(q)
    e(f"v_mov_b32 v{vPF}, 0x7f000000")
    srd(sSS, 4, 256)
    e(f"s_mov_b32 s{sMT}, 0")
    e("s_branch K1_SETUP2")
    lab("K1_PFSETUP")
    if OPT["slp"]: e(f"s_sleep {OPT['slp']}")
    ss_setup()
    pf_setup()
    for i in range(OPT["pfd"]):
        for q in piece_pf(): e(q)
    for r in range(vXV, vWV + 3): e(f"v_mov_b32 v{r}, 0x7f000000")
    lab("K1_SETUP2")
    e(f"s_mov_b64 s[{sFULL}:{sFULL+1}], exec")
    cm("LDS read addresses")
    t0, t1, t2, t3, t4 = 64, 65, 66, 67, 68
    e(f"v_bfe_u32 v{t0}, v{vM}, 1, 3")
    e(f"v_xor_b32 v{t0}, v{t0}, v{vH}")
    e(f"s_lshl_b32 s{sT0}, s{sROT}, 1")
    e(f"v_xor_b32 v{t0}, s{sT0}, v{t0}")
    e(f"v_lshlrev_b32 v{t0}, 4, v{t0}")
    e(f"v_lshl_add_u32 v{t0}, v{vM}, 7, v{t0}")
    e(f"s_lshl_b32 s{sT0}, s{sW}, 12")
    e(f"v_add_u32 v{vXB0}, s{sT0}, v{t0}")
    e(f"v_add_u32 v{vXB}, s{sT0}, v{t0}")
    e(f"v_bfe_u32 v{t0}, v{vL}, 4, 1")
    e(f"v_mul_u32_u24 v{t0}, {WREGB}, v{t0}")
    e(f"v_bfe_u32 v{t1}, v{vL}, 2, 2")
    e(f"v_lshl_add_u32 v{t1}, v{vH}, 3, v{t1}")
    e(f"v_mul_u32_u24 v{t1}, 192, v{t1}")
    e(f"v_add_u32 v{t0}, v{t0}, v{t1}")
    e(f"v_and_b32 v{t1}, 1, v{vL}")
    e(f"v_lshl_add_u32 v{t0}, v{t1}, 4, v{t0}")
    e(f"v_bfe_u32 v{t1}, v{vL}, 1, 1")
    e(f"v_lshl_add_u32 v{t0}, v{t1}, 3, v{t0}")
    e(f"s_mul_i32 s{sT0}, s{sWN}, 96")
    e(f"s_add_u32 s{sT0}, s{sT0}, {WBASE}")
    e(f"s_mul_i32 s{sT1}, s{sROT}, 3072")
    e(f"s_add_u32 s{sT2}, s{sT0}, s{sT1}")
    e(f"v_add_u32 v{vWB0}, s{sT2}, v{t0}")
    e(f"v_add_u32 v{vWA0}, s{sT2}, v{t0}")
    e(f"s_sub_u32 s{sT2}, s{sT0}, s{sT1}")
    e(f"s_add_u32 s{sT2}, s{sT2}, 3072")
    e(f"v_add_u32 v{vWB1}, s{sT2}, v{t0}")
    e(f"s_mov_b32 s{sXR}, 0")
    e(f"s_mov_b32 s{sWR}, 0")
    for r in range(ACC, ACC + 96):
        e(f"v_mov_b32 v{r}, 0")

    def reads(F, wa, sp):
        if OPT["nolds"] == 1: return []
        g = []
        def xr(mbi):
            cst = 32 * sp + 4096 * mbi
            if cst == 0: return [f"ds_read_b128 {vr(F+4*mbi,4)}, v{vXB}"]
            return [f"v_xor_b32 v{vTA}, {cst}, v{vXB}", f"ds_read_b128 {vr(F+4*mbi,4)}, v{vTA}"]
        def wr(t, hh): return [f"ds_read_b64{'' if OPT['trplain'] else '_tr_b16'} {vr(F+8+4*t+2*hh,2)}, v{wa} offset:{32*t+768*hh}"]
        g = [xr(0), wr(0, 0), wr(0, 1), xr(1), wr(1, 0), wr(1, 1), wr(2, 0), wr(2, 1)]
        return g
    def adv_w():
        e(f"v_add_u32 v{vWA1}, s{sWR}, v{vWB1}")
        e(f"s_add_u32 s{sWR}, s{sWR}, {WSLOT}")
        e(f"s_cmp_ge_u32 s{sWR}, {5*WSLOT}")
        e(f"s_cselect_b32 s{sWR}, 0, s{sWR}")
        e(f"v_add_u32 v{vWA0}, s{sWR}, v{vWB0}")
    def adv_x():
        e(f"s_add_u32 s{sXR}, s{sXR}, {XSLOT}")
        e(f"s_cmp_ge_u32 s{sXR}, {3*XSLOT}")
        e(f"s_cselect_b32 s{sXR}, 0, s{sXR}")
        e(f"v_add_u32 v{vXB}, s{sXR}, v{vXB0}")
    def kstep(F, cs, rd, pieces, post=()):
        st = []
        if OPT["stats"]:
            for j in range(4):
                st.append(f"v_dot2c_f32_bf16 v{vS1+(j&1)}, s{sONE}, v{F+j}")
                st.append(f"v_dot2c_f32_bf16 v{vS2+(j&1)}, v{F+j}, v{F+j}")
            if cs:
                for j in range(4):
                    for t in range(3):
                        st.append(f"v_dot2c_f32_bf16 v{vCS+t}, s{sONE}, v{F+8+4*t+j}")
        RPG = OPT["rpg"]
        n = len(st); k = 0; idx = 0; ri = 0; pi = 0
        e("s_waitcnt lgkmcnt(0)")
        for t in range(3):
            for mbi in range(2):
                a = ACC + (mbi * 3 + t) * 16
                if not OPT["nomfma"]: e(f"v_mfma_f32_32x32x16_bf16 {vr(a,16)}, {vr(F+8+4*t,4)}, {vr(F+4*mbi,4)}, {vr(a,16)}")
                for _ in range(RPG):
                    if ri < len(rd):
                        for q in rd[ri]: e(q)
                        ri += 1
                if ri == len(rd):
                    for q in post: e(q)
                    post = ()
                idx += 1
                lo = 6 - len(pieces)
                if idx > lo and pi < len(pieces):
                    for q in pieces[pi]: e(q)
                    pi += 1
                while k < n * idx // 6:
                    e(st[k]); k += 1

    e("s_waitcnt vmcnt(17)")
    e("s_barrier")
    stamp(1); dstamp(1)
    for g in reads(FA, vWA0, 0):
        for q in g: e(q)
    e(f"s_mov_b32 s{sI}, 0")
    def advx_l():
        return [f"s_add_u32 s{sXR}, s{sXR}, {XSLOT}", f"s_cmp_ge_u32 s{sXR}, {3*XSLOT}",
                f"s_cselect_b32 s{sXR}, 0, s{sXR}", f"v_add_u32 v{vXB}, s{sXR}, v{vXB0}"]
    vST0, vST1, vPC = 24, 26, 28
    vPO, vPV = 34, 35
    def poll_issue():
        srd(sSS, 4, 256)
        e(f"v_and_b32 v{vPO}, 7, v{vL}")
        e(f"v_lshlrev_b32 v{vPO}, 2, v{vPO}")
        e(f"buffer_load_dword v{vPV}, v{vPO}, {sr(sSS,4)}, 0 offen sc1")
        a, b, c_ = 36, 37, 38
        e(f"s_lshl_b32 s{sT0}, s{sW}, 5")
        e(f"v_add_u32 v{a}, s{sT0}, v{vM}")
        e(f"v_xor_b32 v{b}, 32, v{a}")
        for r in (a, b):
            e(f"v_add_u32 v{r}, s{sR0}, v{r}")
            e(f"v_med3_i32 v{r}, v{r}, 0, s{sMAXR}")
            e(f"v_lshlrev_b32 v{r}, 3, v{r}")
        e(f"v_and_b32 v{c_}, 3, v{vM}")
        e(f"v_bfe_u32 v{c_+1}, v{vM}, 2, 1")
        e(f"v_lshl_add_u32 v{c_}, v{c_+1}, 3, v{c_}")
        e(f"v_bfe_u32 v{c_+1}, v{vM}, 3, 1")
        e(f"v_lshl_add_u32 v{c_}, v{c_+1}, 2, v{c_}")
        e(f"s_mul_i32 s{sT0}, s{sWN}, 48")
        e(f"v_add_u32 v{c_}, s{sT0}, v{c_}")
        e(f"v_lshrrev_b32 v{c_+1}, 4, v{vM}")
        e(f"s_cmp_eq_u32 s{sTYPE}, 0")
        e(f"s_cselect_b32 s{sT0}, 96, 60")
        e(f"s_mul_i32 s{sT0}, s{sT0}, s{sC}")
        e(f"s_cselect_b32 s{sT1}, 0, 3456")
        e(f"s_add_u32 s{sT0}, s{sT0}, s{sT1}")
        e(f"s_cmp_eq_u32 s{sTYPE}, 0")
        e(f"s_movk_i32 s{sT1}, 672")
        e(f"s_cselect_b32 s{sT1}, 1728, s{sT1}")
        e(f"v_mul_u32_u24 v{c_+2}, s{sT1}, v{c_+1}")
        e(f"v_add_u32 v{c_+2}, s{sT0}, v{c_+2}")
        e(f"v_lshrrev_b32 v{c_+1}, v{c_+1}, 64")
        e(f"s_lshr_b32 s{sT1}, s{sJ}, 1")
        e(f"v_mov_b32 v{c_+3}, s{sT1}")
        e(f"v_mul_u32_u24 v{c_+4}, {2*5504}, v{vH}")
        for t in range(3):
            e(f"v_add_u32 v{c_+5}, {16*t}, v{c_}")
            e(f"v_cmp_le_u32 vcc, v{c_+1}, v{c_+5}")
            e(f"v_add_u32 v{c_+5}, v{c_+5}, v{c_+2}")
            e("s_nop 0")
            e(f"v_cndmask_b32 v{c_+6}, 0, v{c_+3}, vcc")
            e(f"v_add_u32 v{c_+5}, v{c_+5}, v{c_+6}")
            e(f"v_lshlrev_b32 v{48+t}, 2, v{c_+5}")
            e(f"v_add_lshl_u32 v{52+t}, v{c_+5}, v{c_+4}, 2")
    def poll_check():
        e(f"s_mov_b32 s{sT1}, 0")
        tick(96)
        lab("K1_POLL")
        e(f"v_cmp_ne_u32 vcc, 32, v{vPV}")
        e("s_nop 4")
        e("s_cbranch_vccz K1_POLLOK")
        e("s_sleep 8")
        e(f"buffer_load_dword v{vPV}, v{vPO}, {sr(sSS,4)}, 0 offen sc1")
        e(f"s_add_u32 s{sT1}, s{sT1}, 1")
        e(f"s_cmp_lt_u32 s{sT1}, 0x4000")
        e("s_waitcnt vmcnt(0)")
        e("s_cbranch_scc1 K1_POLL")
        lab("K1_POLLOK")
        tock(96)
        e(f"s_mov_b32 s{sT0}, {RS_OFF}")
        e(f"s_mov_b32 s{sT1}, {CS_OFF}")
        e(f"s_mov_b32 s{sT2}, {CS_OFF + 5504*4}")
        e(f"buffer_load_dwordx2 {vr(vST0,2)}, v36, {sr(sWS,4)}, s{sT0} offen sc1")
        e(f"buffer_load_dwordx2 {vr(vST1,2)}, v37, {sr(sWS,4)}, s{sT0} offen sc1")
        for t in range(3):
            e(f"buffer_load_dword v{vPC+t}, v{52+t}, {sr(sWS,4)}, s{sT1} offen sc1")
            e(f"buffer_load_dword v{vPC+3+t}, v{48+t}, {sr(sWS,4)}, s{sT2} offen sc1")
    def body(mode, tag, cnt):
        dma = mode == "dma"
        if cnt: L.append(".p2align 6")
        lab(f"K1_LOOP{tag}")
        cm("---- even step")
        adv_w()
        if tag == "B": poll_issue()
        if mode in ("dma", "tail"): e("s_waitcnt vmcnt(15)" if tag == "B" else "s_waitcnt vmcnt(14)")
        if not OPT["nobar"]: e("s_barrier")
        kstep(FA, True, reads(FB, vWA1, 1), [piece_x(i) for i in range(4)] if dma else [piece_pf()] if mode == "pf" else [])
        kstep(FB, False, reads(FA, vWA0, 2), [piece_w(i) for i in range(3)] if dma else [])
        cm("---- odd step")
        adv_w()
        if mode in ("dma", "tail"): e("s_waitcnt vmcnt(10)" if dma else "s_waitcnt vmcnt(0)")
        if tag == "B": poll_check()
        if not OPT["nobar"]: e("s_barrier")
        kstep(FA, True, reads(FB, vWA1, 3), [piece_x(i) for i in range(4, 8)] if dma else [], advx_l())
        kstep(FB, False, reads(FA, vWA0, 0), [piece_w(i) for i in range(3)] if dma else [])
        if mode == "pf":
            npf = OPT["pfd"] if OPT["pf"] else 0
            inc = 1 if OPT["pf"] else 0
            e(f"s_cmp_eq_u32 s{sI}, 1")
            e("s_cbranch_scc0 K1_PH1")
            tick(97)
            ss_compute(npf + 2 * inc)
            tock(97)
            lab("K1_PH1")
            e(f"s_cmp_eq_u32 s{sW}, 4")
            e("s_cbranch_scc0 K1_PH3")
            e(f"s_cmp_eq_u32 s{sI}, 2")
            e("s_cbranch_scc0 K1_PH2")
            ss_publish()
            lab("K1_PH2")
            e(f"s_cmp_eq_u32 s{sI}, 4")
            e("s_cbranch_scc0 K1_PH3")
            e(f"s_and_b32 s{sT1}, s2, 7")
            signal(2 * inc, sT1, 0)
            lab("K1_PH3")
        if cnt:
            e(f"s_add_u32 s{sI}, s{sI}, 1")
            e(f"s_cmp_lt_u32 s{sI}, {cnt}")
            e(f"s_cbranch_scc1 K1_LOOP{tag}")
    e(f"s_cmp_lt_u32 s{sW}, 4")
    e("s_cbranch_scc0 K1_LOOPP")
    body("tail" if OPT["nodma"] else "dma", "A", 8)
    e("s_branch K1_LOOPB")
    body("pf", "P", 8)
    body("tail", "B", 0)
    body("tail2", "C", 0)

    cm("mean correction")
    stamp(2); dstamp(2)
    a, b, c_, d = vT + 60, vT + 61, vT + 62, vT + 63
    e(f"v_cmp_eq_u32 vcc, 0, v{vH}")
    e(f"s_mov_b32 s{sT1}, 0xffff")
    e("s_waitcnt vmcnt(0) lgkmcnt(0)")
    for r in (FA + 2, FA + 3, FA + 6, FA + 7, FA + 10, FA + 11, FA + 14, FA + 15, FA + 18, FA + 19):
        e(f"v_mov_b32 v{r}, 0")
    for t in range(3):
        e(f"v_cndmask_b32 v{vCS+t}, 0, v{vPC+3+t}, vcc")
    e(f"v_mov_b32 v{FA}, v{vST0}")
    e(f"v_and_b32 v{FA+1}, 0xffff, v{vST0}")
    e(f"v_mov_b32 v{FA+4}, v{vST1}")
    e(f"v_and_b32 v{FA+5}, 0xffff, v{vST1}")
    for t in range(3):
        cc, p, q, hf = vT + 12, vT + 13, vT + 14, vT + 15
        e(f"v_add_f32 v{cc}, v{vCS+t}, v{vPC+t}")
        e(f"v_sub_f32 v{cc}, 0, v{cc}")
        e(f"v_cvt_pk_bf16_f32 v{p}, v{cc}, v{cc}")
        e(f"v_and_b32 v{hf}, 0xffff0000, v{p}")
        e(f"v_sub_f32 v{cc}, v{cc}, v{hf}")
        e(f"v_cvt_pk_bf16_f32 v{q}, v{cc}, v{cc}")
        e(f"v_and_b32 v{hf}, 0xffff0000, v{q}")
        e(f"v_sub_f32 v{cc}, v{cc}, v{hf}")
        e(f"v_bfi_b32 v{FA+8+4*t}, s{sT1}, v{p}, v{q}")
        e(f"v_cvt_pk_bf16_f32 v{FA+9+4*t}, v{cc}, 0")
    e("s_nop 1")
    for t in range(3):
        for mbi in range(2):
            a_ = ACC + (mbi * 3 + t) * 16
            e(f"v_mfma_f32_32x32x16_bf16 {vr(a_,16)}, {vr(FA+8+4*t,4)}, {vr(FA+4*mbi,4)}, {vr(a_,16)}")
    vR = vT + 12
    e(f"v_rcp_f32 v{vR}, v{vST0+1}")
    e(f"v_rcp_f32 v{vR+1}, v{vST1+1}")
    stamp(3)
    e(f"s_cmp_eq_u32 s{sTYPE}, 0")
    e("s_cbranch_scc0 K1_EPI_ATT")

    cm("ff epilogue")
    K0 = -2.0 * 0.7978845608028654 * 1.4426950408889634
    K1c = K0 * 0.044715
    vC0, vC1, vI2 = vT + 14, vT + 16, vT + 18
    vSA = vT + 20
    for mbi in range(2):
        st = (vST0, vST1)[mbi]
        e(f"v_mul_f32 v{vC0+mbi}, {f32(K0)}, v{vR+mbi}")
        e(f"v_mul_f32 v{vC1+mbi}, v{vR+mbi}, v{vR+mbi}")
        e(f"v_mul_f32 v{vC1+mbi}, v{vC1+mbi}, v{vR+mbi}")
        e(f"v_mul_f32 v{vC1+mbi}, {f32(K1c)}, v{vC1+mbi}")
        e(f"v_mul_f32 v{vI2+mbi}, v{st+1}, v{st+1}")
    e(f"v_and_b32 v{a}, 15, v{vM}")
    e(f"v_lshlrev_b32 v{a}, 4, v{a}")
    e(f"v_lshl_add_u32 v{a}, v{vH}, 8, v{a}")
    e(f"v_lshrrev_b32 v{b}, 4, v{vM}")
    e(f"v_lshl_add_u32 v{a}, v{b}, 10, v{a}")
    e(f"s_lshl_b32 s{sT0}, s{sWN}, 11")
    e(f"v_add_u32 v{vSA}, s{sT0}, v{a}")
    e(f"v_xor_b32 v{vSA+1}, 2048, v{vSA}")
    e(f"s_lshr_b32 s{sT0}, s{sR0}, 6")
    e(f"s_add_u32 s{sT0}, s{sT0}, s{sWM}")
    e(f"s_mul_i32 s{sT0}, s{sT0}, 74")
    e(f"s_mul_i32 s{sT1}, s{sC}, 3")
    e(f"s_add_u32 s{sT0}, s{sT0}, s{sT1}")
    e(f"s_add_u32 s{sT0}, s{sT0}, 20")
    e(f"s_lshl_b32 s{sT0}, s{sT0}, 12")
    e(f"s_mul_i32 s{sT1}, s{sWN}, 4608")
    e(f"s_add_u32 s{sST}, s{sT0}, s{sT1}")
    e(f"s_add_u32 s{sST+2}, s{sST}, 4096")
    e(f"s_mul_i32 s{sT1}, s{sWN}, 7680")
    e(f"s_add_u32 s{sST+1}, s{sT0}, s{sT1}")
    e(f"s_add_u32 s{sST+1}, s{sST+1}, 512")
    e("s_nop 7")
    tb = vT + 24
    for mbi in range(2):
        for t in range(3):
            A = ACC + (mbi * 3 + t) * 16
            z = tb; dd = tb + 8; o = tb + 16 + 4 * ((mbi * 3 + t) & 1)
            bs = f"op_sel:[0,{mbi},{mbi}] op_sel_hi:[1,{mbi},{mbi}]"
            for j in range(0, 8, 2):
                e(f"v_pk_mul_f32 {vr(z+j,2)}, {vr(A+j,2)}, {vr(A+j,2)}")
            for j in range(0, 8, 2):
                e(f"v_pk_fma_f32 {vr(z+j,2)}, {vr(z+j,2)}, {vr(vC1,2)}, {vr(vC0,2)} {bs}")
            for j in range(0, 8, 2):
                e(f"v_pk_mul_f32 {vr(z+j,2)}, {vr(z+j,2)}, {vr(A+j,2)}")
            for j in range(8):
                e(f"v_exp_f32 v{z+j}, v{z+j}")
            for j in range(0, 8, 2):
                e(f"v_pk_mul_f32 {vr(dd+j,2)}, {vr(A+j,2)}, {vr(A+8+j,2)}")
            for j in range(0, 8, 2):
                e(f"v_pk_fma_f32 {vr(z+j,2)}, {vr(z+j,2)}, {vr(vI2,2)}, {vr(vI2,2)} {bs}")
            for j in range(8):
                e(f"v_rcp_f32 v{z+j}, v{z+j}")
            e("s_nop 0")
            for j in range(0, 8, 2):
                e(f"v_pk_mul_f32 {vr(dd+j,2)}, {vr(dd+j,2)}, {vr(z+j,2)}")
            for j in range(4):
                e(f"v_cvt_pk_bf16_f32 v{o+j}, v{dd+2*j}, v{dd+2*j+1}")
            e(f"buffer_store_dwordx4 {vr(o,4)}, v{vSA+mbi}, {sr(sWS,4)}, s{sST+t} offen{WT}")
    e(f"s_lshr_b32 s{sT1}, s{sR0}, 3")
    e(f"s_mov_b32 s{sT2}, 32")
    e(f"s_mov_b32 s{sT3}, {FL_OFF}")
    e("s_branch P1_DONE")

    lab("K1_EPI_ATT")
    cm("write q,k,v (bf16) to LDS")
    e("s_barrier")
    vQA = vT + 14
    e(f"s_lshl_b32 s{sT0}, s{sW}, 5")
    e(f"v_add_u32 v{a}, s{sT0}, v{vM}")
    e(f"v_xor_b32 v{b}, 32, v{a}")
    e(f"s_mul_i32 s{sT1}, s{sWN}, 96")
    e(f"v_lshlrev_b32 v{c_}, 4, v{vH}")
    e(f"v_add_u32 v{c_}, s{sT1}, v{c_}")
    e(f"s_movk_i32 s{sT2}, {QP}")
    e(f"v_mad_u32_u24 v{vQA}, v{a}, s{sT2}, v{c_}")
    e(f"v_mad_u32_u24 v{vQA+1}, v{b}, s{sT2}, v{c_}")
    e("s_nop 7")
    tb = vT + 24
    for mbi in range(2):
        for t in range(3):
            A = ACC + (mbi * 3 + t) * 16
            o = tb + 8 * ((mbi * 3 + t) & 1)
            for j in range(0, 16, 2):
                e(f"v_pk_mul_f32 {vr(A+j,2)}, {vr(A+j,2)}, {vr(vR,2)} op_sel:[0,{mbi}] op_sel_hi:[1,{mbi}]")
            for j in range(8):
                e(f"v_cvt_pk_bf16_f32 v{o+j}, v{A+2*j}, v{A+2*j+1}")
            for R in range(2):
                for hh in range(2):
                    e(f"ds_write_b64 v{vQA+mbi}, {vr(o+4*R+2*hh,2)} offset:{192*R + 32*t + 8*hh}")
    cm("attention phase setup (MFMA form): lane (a = l&15, g = l>>4); queries rows 32w+2a+par")
    vROW, vGR = vT, vT + 1
    vQ, vK0, vV1, vV0, vOW = vT + 2, vT + 3, vT + 4, vT + 5, vT + 6
    vCAP = vT + 8
    vMA, vMB, vM1, vM0 = vT + 12, vT + 13, vT + 14, vT + 16
    sSEL = 52
    ta, tg, tx, ty = vT + 18, vT + 19, 44, 45
    e(f"v_add_u32 v{vROW}, s{sT0}, v{vM}")
    e(f"v_add_u32 v{vGR}, s{sR0}, v{vROW}")
    e(f"v_and_b32 v{ta}, 15, v{vL}")
    e(f"v_lshrrev_b32 v{tg}, 4, v{vL}")
    e(f"v_lshl_add_u32 v{tx}, v{ta}, 1, s{sT0}")
    e(f"v_mul_u32_u24 v{ty}, {QP}, v{tx}")
    e(f"v_lshl_add_u32 v{vQ}, v{tg}, 4, v{ty}")
    e(f"v_lshl_add_u32 v{vOW}, v{tg}, 3, v{ty}")
    e(f"v_subrev_u32 v{tx}, 32, v{tx}")
    e(f"v_max_i32 v{tx}, 0, v{tx}")
    e(f"v_mul_u32_u24 v{ty}, {QP}, v{tx}")
    e(f"v_lshl_add_u32 v{vK0}, v{tg}, 4, v{ty}")
    e(f"v_lshrrev_b32 v{tx}, 2, v{vL}")
    e(f"v_lshl_add_u32 v{tx}, v{tx}, 1, s{sT0}")
    e(f"v_and_b32 v{46}, 3, v{vL}")
    e(f"v_lshlrev_b32 v{46}, 3, v{46}")
    e(f"v_mad_u32_u24 v{vV1}, v{tx}, s{sT2}, v{46}")
    e(f"v_subrev_u32 v{tx}, 32, v{tx}")
    e(f"v_max_i32 v{tx}, 0, v{tx}")
    e(f"v_mad_u32_u24 v{vV0}, v{tx}, s{sT2}, v{46}")
    vB1, vB0 = 224, 228
    e(f"v_mov_b32 v{46}, {f32(-1e30)}")
    e(f"s_add_i32 s{sT1}, s{sT0}, s{sR0}")
    e(f"v_mov_b32 v{vM1}, 0")
    e(f"v_mov_b32 v{vM1+1}, 0")
    for ch in range(6):
        for j in range(4): e(f"v_mov_b32 v{48+28*ch+j}, 0")
    for r in range(4):
        e(f"v_lshl_add_u32 v{tx}, v{tg}, 2, {r}")
        e(f"v_cmp_le_u32 s[{sSEL+2*r}:{sSEL+2*r+1}], v{tx}, v{ta}")
        e(f"v_subrev_u32 v{ty}, 16, v{tx}")
        e("s_nop 0")
        e(f"v_cndmask_b32 v{tx}, v{ty}, v{tx}, s[{sSEL+2*r}:{sSEL+2*r+1}]")
        e(f"v_sub_u32 v{ty}, v{ta}, v{tx}")
        e(f"v_cmp_ge_u32 vcc, 7, v{ty}")
        e(f"v_lshl_add_u32 v{ty}, v{tx}, 1, s{sT1}")
        e(f"v_cmp_le_i32 s[{sT2}:{sT3}], 0, v{ty}")
        e(f"s_and_b64 vcc, vcc, s[{sT2}:{sT3}]")
        e(f"v_mov_b32 v{ty}, {'0xffff0000' if r & 1 else '0xffff'}")
        e(f"v_cndmask_b32 v{47}, v{46}, 0, vcc")
        e(f"v_cndmask_b32 v{vB1+r}, v{46}, v{47}, s[{sSEL+2*r}:{sSEL+2*r+1}]")
        e(f"v_cndmask_b32 v{vB0+r}, v{47}, v{46}, s[{sSEL+2*r}:{sSEL+2*r+1}]")
        e(f"v_cndmask_b32 v{ty}, 0, v{ty}, s[{sSEL+2*r}:{sSEL+2*r+1}]")
        e(f"v_or_b32 v{vM1+(r>>1)}, v{vM1+(r>>1)}, v{ty}")
    e(f"v_not_b32 v{vM0}, v{vM1}")
    e(f"v_not_b32 v{vM0+1}, v{vM1+1}")
    e(f"s_mov_b32 s{sI}, 0")
    e(f"s_cmp_eq_u32 s{sC}, 10")
    e(f"s_cselect_b32 s{sMT}, 2, 3")
    e("s_waitcnt lgkmcnt(0)")
    e("s_barrier")
    stamp(4)
    Q = 44
    class R_: pass
    RS = []
    for ch in range(6):
        r_ = R_(); B = 48 + 28 * ch
        r_.hd, r_.pz = ch >> 1, ch & 1
        r_.off = 392 * r_.pz + 40 * r_.hd
        r_.QF, r_.K1, r_.K0, r_.VA, r_.S1, r_.S0 = B, B+4, B+8, B+12, B+20, B+24
        r_.PB, r_.O, r_.LG, r_.OUT, r_.TP = r_.QF, r_.K1, r_.S1, r_.S1, r_.S0
        RS.append(r_)
    def all6(f):
        for r_ in RS: f(r_)
    SC = 20 ** -0.5
    LOG2E = 1.4426950408889634
    tick(96)
    e("s_mov_b32 exec_hi, 0xffff")
    all6(lambda r_: e(f"ds_read_b64 {vr(r_.QF,2)}, v{vQ} offset:{r_.off}"))
    e("s_mov_b32 exec_hi, 0")
    all6(lambda r_: e(f"ds_read_b64 {vr(r_.QF+2,2)}, v{vQ} offset:{r_.off+8}"))
    e("s_mov_b32 exec_hi, -1")
    for r_ in RS:
        o = r_.off // 8 + 16
        e(f"ds_read2_b64 {vr(r_.K1,4)}, v{vQ} offset0:{o} offset1:{o+1}")
        e(f"ds_read2_b64 {vr(r_.K0,4)}, v{vK0} offset0:{o} offset1:{o+1}")
    e(f"s_mov_b32 s{sSEL}, {f32(SC * LOG2E)}")
    for r_ in RS:
        if r_.pz == 0: e(f"s_waitcnt lgkmcnt({8 - 4 * r_.hd})")
        e(f"v_mfma_f32_16x16x32_bf16 {vr(r_.S1,4)}, {vr(r_.K1,4)}, {vr(r_.QF,4)}, {vr(vB1,4)}")
        e(f"v_mfma_f32_16x16x32_bf16 {vr(r_.S0,4)}, {vr(r_.K0,4)}, {vr(r_.QF,4)}, {vr(vB0,4)}")
    for r_ in RS:
        for dt in range(2):
            e(f"ds_read_b64_tr_b16 {vr(r_.VA+4*dt,2)}, v{vV0} offset:{256+r_.off+32*dt}")
            e(f"ds_read_b64_tr_b16 {vr(r_.VA+4*dt+2,2)}, v{vV1} offset:{256+r_.off+32*dt}")
    all6(lambda r_: [e(f"v_max_f32 v{r_.LG+r}, v{r_.S0+r}, v{r_.S1+r}") for r in range(4)])
    EF = [(RS[2*h].TP, RS[2*h+1].TP) for h in range(3)]
    def xred(op, mid):
        for E_, F_ in EF: e(f"v_permlane16_swap_b32 v{E_+1}, v{F_+1}")
        for E_, F_ in EF: e(f"{op} v{E_}, v{E_+1}, v{F_+1}")
        for E_, F_ in EF: e(f"{op} v{F_}, v{E_+1}, v{F_+1}")
        for E_, F_ in EF: e(f"v_permlane32_swap_b32 v{E_}, v{F_}")
        for E_, F_ in EF: e(f"{op} v{E_}, v{E_}, v{F_}")
        for E_, F_ in EF: e(mid(E_))
        for E_, F_ in EF: e(f"v_mov_b32 v{F_}, v{E_}")
        for E_, F_ in EF: e(f"v_permlane16_swap_b32 v{E_}, v{F_}")
    all6(lambda r_: e(f"v_max_f32 v{r_.TP+1}, v{r_.LG}, v{r_.LG+1}"))
    all6(lambda r_: e(f"v_max3_f32 v{r_.TP+1}, v{r_.TP+1}, v{r_.LG+2}, v{r_.LG+3}"))
    xred("v_max_f32", lambda E_: f"v_mul_f32 v{E_}, {f32(-SC * LOG2E)}, v{E_}")
    all6(lambda r_: [e(f"v_pk_fma_f32 {vr(r_.LG+r,2)}, {vr(r_.LG+r,2)}, {sr(sSEL,2)}, {vr(r_.TP,2)} op_sel_hi:[1,0,0]") for r in (0, 2)])
    all6(lambda r_: [e(f"v_exp_f32 v{r_.LG+r}, v{r_.LG+r}") for r in range(4)])
    all6(lambda r_: e(f"v_pk_add_f32 {vr(r_.TP+2,2)}, {vr(r_.LG,2)}, {vr(r_.LG+2,2)}"))
    all6(lambda r_: e(f"v_add_f32 v{r_.TP+1}, v{r_.TP+2}, v{r_.TP+3}"))
    xred("v_add_f32", lambda E_: f"v_rcp_f32 v{E_}, v{E_}")
    all6(lambda r_: [e(f"v_pk_mul_f32 {vr(r_.LG+r,2)}, {vr(r_.LG+r,2)}, {vr(r_.TP,2)} op_sel_hi:[1,0]") for r in (0, 2)])
    all6(lambda r_: [e(f"v_cvt_pk_bf16_f32 v{r_.TP+q}, v{r_.LG+2*q}, v{r_.LG+2*q+1}") for q in range(2)])
    e("s_waitcnt lgkmcnt(0)")
    for r_ in RS:
        for q in range(4): e(f"v_and_b32 v{r_.PB+q}, v{r_.TP+(q&1)}, v{(vM0 if q < 2 else vM1)+(q&1)}")
    for r_ in RS:
        for dt in range(2):
            e(f"v_mfma_f32_16x16x32_bf16 {vr(r_.O+4*dt,4)}, {vr(r_.VA+4*dt,4)}, {vr(r_.PB,4)}, 0")
    e("s_nop 3")
    for r_ in RS:
        for q in range(4): e(f"v_cvt_pk_bf16_f32 v{r_.OUT+q}, v{r_.O+2*q}, v{r_.O+2*q+1}")
        e(f"ds_write_b64 v{vOW}, {vr(r_.OUT,2)} offset:{r_.off}")
    e("s_mov_b64 exec, 0xffff")
    all6(lambda r_: e(f"ds_write_b64 v{vOW}, {vr(r_.OUT+2,2)} offset:{r_.off+32}"))
    e("s_mov_b64 exec, -1")
    cm("o rows (own 32 rows, staged in the q slots) -> A2 in 16-B chunks")
    tock(96); stamp(3)
    vRP, vLB, vA = vT + 4, vT + 5, vT + 6
    e(f"v_lshrrev_b32 v{vT+15}, 6, v{vGR}")
    e(f"v_mul_u32_u24 v{vT+15}, 296, v{vT+15}")
    e(f"v_bfe_u32 v{vT+16}, v{vGR}, 4, 2")
    e(f"v_add_u32 v{vT+15}, v{vT+15}, v{vT+16}")
    e(f"v_lshlrev_b32 v{vT+15}, 10, v{vT+15}")
    e(f"v_and_b32 v{vT+16}, 15, v{vGR}")
    e(f"v_lshl_add_u32 v{vRP}, v{vT+16}, 4, v{vT+15}")
    e(f"v_cmp_le_u32 vcc, 16, v{vROW}")
    e(f"s_movk_i32 s{sT1}, 0x800")
    e(f"v_cmp_gt_i32 s[{sT2}:{sT3}], s{sT1}, v{vGR}")
    e(f"s_and_b64 vcc, vcc, s[{sT2}:{sT3}]")
    e(f"v_mov_b32 v{vT+15}, 0x7f000000")
    e(f"v_cndmask_b32 v{vRP}, v{vT+15}, v{vRP}, vcc")
    e(f"s_and_b32 s{sT0}, s{sC}, 1")
    e(f"s_lshl_b32 s{sT1}, s{sT0}, 3")
    e(f"v_mul_u32_u24 v{vLB}, {QP}, v{vROW}")
    e(f"v_lshl_add_u32 v{vT+16}, v{vH}, 4, v{vLB}")
    e(f"v_add_u32 v{vT+16}, s{sT1}, v{vT+16}")
    e(f"s_cmp_eq_u32 s{sT0}, 0")
    e(f"s_cselect_b32 s{sT2}, 112, 0")
    e(f"v_add_u32 v{vLB}, s{sT2}, v{vLB}")
    e("s_waitcnt lgkmcnt(0)")
    for i in range(4):
        e(f"ds_read2_b64 {vr(Q+4*i,4)}, v{vT+16} offset0:{4*i} offset1:{4*i+1}")
    e(f"ds_read_b64 {vr(Q+16,2)}, v{vLB}")
    e(f"s_mul_i32 s{sST}, s{sC}, 15")
    e(f"s_add_u32 s{sST}, s{sST}, s{sT0}")
    e(f"s_lshr_b32 s{sST}, s{sST}, 1")
    e(f"s_cmp_eq_u32 s{sC}, 10")
    e(f"s_cselect_b32 s{sT3}, 5, 7")
    for i in range(5):
        if i < 4:
            e(f"v_add_u32 v{vT+15}, {2*i}, v{vH}")
            e(f"v_cmp_gt_u32 vcc, s{sT3}, v{vT+15}")
            e(f"v_add_u32 v{vT+15}, s{sST}, v{vT+15}")
        else:
            e(f"s_lshl_b32 s{sT2}, s{sT0}, 3")
            e(f"s_sub_u32 s{sT2}, 7, s{sT2}")
            e(f"s_add_u32 s{sT2}, s{sT2}, s{sST}")
            e(f"v_mov_b32 v{vT+15}, s{sT2}")
            e(f"s_sub_u32 s{sT3}, s{sT3}, 6")
            e(f"v_cmp_gt_i32 vcc, s{sT3}, v{vH}")
        e(f"v_lshrrev_b32 v{vT+16}, 2, v{vT+15}")
        e(f"v_lshl_add_u32 v{vA+i}, v{vT+16}, 12, v{vRP}")
        e(f"v_and_b32 v{vT+15}, 3, v{vT+15}")
        e(f"v_lshl_add_u32 v{vA+i}, v{vT+15}, 8, v{vA+i}")
        e(f"v_mov_b32 v{vT+16}, 0x7f000000")
        e(f"v_cndmask_b32 v{vA+i}, v{vT+16}, v{vA+i}, vcc")
    e("s_waitcnt lgkmcnt(0)")
    for i in range(4):
        e(f"buffer_store_dwordx4 {vr(Q+4*i,4)}, v{vA+i}, {sr(sWS,4)}, 0 offen{WT}")
    e(f"buffer_store_dwordx2 {vr(Q+16,2)}, v{vA+4}, {sr(sWS,4)}, s{sT1} offen{WT}")
    e(f"s_add_u32 s{sT1}, s{sR0}, 16")
    e(f"s_add_u32 s{sT2}, s{sR0}, 255")
    e(f"s_min_u32 s{sT2}, s{sT2}, 0x7ff")
    e(f"s_lshr_b32 s{sT1}, s{sT1}, 6")
    e(f"s_lshr_b32 s{sT2}, s{sT2}, 6")
    e(f"s_sub_u32 s{sT2}, s{sT2}, s{sT1}")
    e(f"s_add_u32 s{sT2}, s{sT2}, 1")
    e(f"s_lshl_b32 s{sT1}, s{sT1}, 3")
    e(f"s_lshl_b32 s{sT2}, s{sT2}, 3")
    e(f"s_mov_b32 s{sT3}, {FL_OFF + 4}")
    e("s_branch P1_DONE")

    lab("K1_SPARE")
    sSP = sC
    e(f"s_mov_b32 s{sSP}, s{sT1}")
    e("s_waitcnt lgkmcnt(0)")
    srd(sWA, 28, 640 * 1280)
    srd(sWS, 6, WS_USED)
    e(f"s_cmp_lt_u32 s{sW}, 4")
    srd(sX, 24, 2048 * 1280)
    srd(sSS, 4, 256)
    e(f"s_mov_b32 s{sMT}, 0")
    e(f"s_cmp_lt_u32 s{sW}, 4")
    e("s_cbranch_scc1 K1_SP_NOPF")
    ss_setup()
    pf_setup()
    for i in range(8):
        for q in piece_pf(): e(q)
    ss_compute(8 if OPT["pf"] else 0)
    lab("K1_SP_NOPF")
    e("s_barrier")
    e(f"s_cmp_eq_u32 s{sW}, 4")
    e("s_cbranch_scc0 K1_SP_NOPUB")
    ss_publish()
    e(f"s_and_b32 s{sT1}, s2, 7")
    signal(0, sT1, 0)
    lab("K1_SP_NOPUB")
    srd(sWB, 36, 1728 * 1280)
    vDV = 4
    vRA = 10
    vKY = 11
    vSO = 12
    e(f"s_mul_i32 s{sT0}, s{sW}, 320")
    e(f"s_mov_b32 s{sT1}, 52429")
    e(f"s_movk_i32 s{sT2}, 1280")
    for q in range(5):
        e(f"v_add_u32 v{t0}, s{sT0}, v{vL}")
        if q: e(f"v_add_u32 v{t0}, {64*q}, v{t0}")
        e(f"v_mul_lo_u32 v{t1}, v{t0}, s{sT1}")
        e(f"v_lshrrev_b32 v{t1}, 22, v{t1}")
        e(f"v_mul_u32_u24 v{t2}, 80, v{t1}")
        e(f"v_sub_u32 v{t0}, v{t0}, v{t2}")
        e(f"v_and_b32 v{t2}, 3, v{t1}")
        e(f"v_bfe_u32 v{t3}, v{t1}, 3, 1")
        e(f"v_lshl_add_u32 v{t2}, v{t3}, 2, v{t2}")
        e(f"v_lshlrev_b32 v{t2}, 1, v{t2}")
        e(f"v_xor_b32 v{t0}, v{t0}, v{t2}")
        e(f"v_mul_lo_u32 v{t1}, v{t1}, s{sT2}")
        e(f"v_lshl_add_u32 v{vDV+q}, v{t0}, 4, v{t1}")
    e(f"v_lshrrev_b32 v{t0}, 4, v{vL}")
    e(f"v_bfe_u32 v{t1}, v{vL}, 2, 2")
    e(f"v_lshl_add_u32 v{t2}, v{t0}, 3, v{t1}")
    e(f"v_mul_lo_u32 v{t2}, v{t2}, s{sT2}")
    e(f"v_and_b32 v{t3}, 3, v{vL}")
    e(f"v_lshl_add_u32 v{vRA}, v{t3}, 3, v{t2}")
    e(f"v_and_b32 v{t0}, 1, v{t0}")
    e(f"v_lshl_add_u32 v{t0}, v{t0}, 2, v{t1}")
    e(f"v_lshlrev_b32 v{vKY}, 5, v{t0}")
    e(f"v_lshlrev_b32 v{vSO}, 4, v{vL}")
    e(f"s_mov_b32 s{sI}, 0")
    sKB = sR0
    lab("K1_SP_ROUND")
    for jj in range(3):
        e(f"s_mul_i32 s{sKB}, s{sI}, 39")
        e(f"s_add_u32 s{sKB}, s{sKB}, s{sSP}")
        e(f"s_add_u32 s{sKB}, s{sKB}, {13*jj}")
        e(f"s_cmp_lt_u32 s{sKB}, 74")
        e(f"s_cbranch_scc0 K1_SP_NOLD{jj}")
        e(f"s_mul_i32 s{sXD}, s{sW}, 5120")
        e(f"s_add_u32 s{sXD}, s{sXD}, {40960*jj}")
        e(f"s_cmp_lt_u32 s{sKB}, 20")
        e(f"s_cbranch_scc0 K1_SP_DN{jj}")
        e(f"s_mul_i32 s{sXSO}, s{sKB}, 40960")
        for q in range(5):
            e(f"s_add_u32 m0, s{sXD}, {1024*q}")
            e("s_nop 0")
            e(f"buffer_load_dwordx4 v{vDV+q}, {sr(sWA,4)}, s{sXSO} offen lds")
        e(f"s_branch K1_SP_NOLD{jj}")
        lab(f"K1_SP_DN{jj}")
        e(f"s_sub_u32 s{sXSO}, s{sKB}, 20")
        e(f"s_mul_i32 s{sXSO}, s{sXSO}, 40960")
        for q in range(5):
            e(f"s_add_u32 m0, s{sXD}, {1024*q}")
            e("s_nop 0")
            e(f"buffer_load_dwordx4 v{vDV+q}, {sr(sWB,4)}, s{sXSO} offen lds")
        lab(f"K1_SP_NOLD{jj}")
    e("s_waitcnt vmcnt(0)")
    e("s_barrier")
    for jj in range(3):
        e(f"s_mul_i32 s{sKB}, s{sI}, 39")
        e(f"s_add_u32 s{sKB}, s{sKB}, s{sSP}")
        e(f"s_add_u32 s{sKB}, s{sKB}, {13*jj}")
        e(f"s_cmp_lt_u32 s{sKB}, 74")
        e(f"s_cbranch_scc0 K1_SP_NOST{jj}")
        e(f"s_mul_i32 s{sT0}, s{sW}, 160")
        for j in range(5):
            e(f"s_add_u32 s{sT1}, s{sT0}, {32*j}")
            e(f"v_xad_u32 v{vTA}, v{vKY}, s{sT1}, v{vRA}")
            e(f"ds_read_b64_tr_b16 {vr(24+4*j,2)}, v{vTA} offset:{40960*jj - (40960 if jj==2 else 0)}"
              if jj < 2 else f"v_add_u32 v{vTA}, 40960, v{vTA}")
            if jj == 2:
                e(f"ds_read_b64_tr_b16 {vr(24+4*j,2)}, v{vTA} offset:40960")
                e(f"ds_read_b64_tr_b16 {vr(26+4*j,2)}, v{vTA} offset:{40960+5120}")
            else:
                e(f"ds_read_b64_tr_b16 {vr(26+4*j,2)}, v{vTA} offset:{40960*jj+5120}")
        e(f"s_mul_i32 s{sT0}, s{sW}, 74")
        e(f"s_add_u32 s{sT0}, s{sT0}, s{sKB}")
        e(f"s_mul_i32 s{sT0}, s{sT0}, 5120")
        e(f"s_add_u32 s{sT0}, s{sT0}, {W2_OFF}")
        e(f"s_add_u32 s{sT1}, s{sT0}, 4096")
        e("s_waitcnt lgkmcnt(0)")
        for j in range(4):
            e(f"buffer_store_dwordx4 {vr(24+4*j,4)}, v{vSO}, {sr(sWS,4)}, s{sT0} offen offset:{1024*j}{WT}")
        e(f"buffer_store_dwordx4 {vr(40,4)}, v{vSO}, {sr(sWS,4)}, s{sT1} offen{WT}")
        e("s_nop 1")
        lab(f"K1_SP_NOST{jj}")
    e("s_waitcnt vmcnt(0)")
    e("s_barrier")
    e(f"s_add_u32 s{sI}, s{sI}, 1")
    e(f"s_cmp_lt_u32 s{sI}, 2")
    e("s_cbranch_scc1 K1_SP_ROUND")
    cm("spare WGs must see every flag line zeroed (stats counter complete) before adding")
    srd(sSS, 4, 256)
    e(f"v_and_b32 v34, 7, v{vL}")
    e(f"v_lshlrev_b32 v34, 2, v34")
    e(f"s_mov_b32 s{sT1}, 0")
    lab("K1_SPOLL")
    e(f"buffer_load_dword v35, v34, {sr(sSS,4)}, 0 offen sc1")
    e(f"s_add_u32 s{sT1}, s{sT1}, 1")
    e("s_waitcnt vmcnt(0)")
    e(f"v_cmp_ne_u32 vcc, 32, v35")
    e("s_nop 4")
    e("s_cbranch_vccz K1_SPOLLOK")
    e("s_sleep 16")
    e(f"s_cmp_lt_u32 s{sT1}, 0x4000")
    e("s_cbranch_scc1 K1_SPOLL")
    lab("K1_SPOLLOK")
    e(f"s_mov_b32 s{sT1}, 0")
    e(f"s_movk_i32 s{sT2}, 256")
    e(f"s_mov_b32 s{sT3}, {FL_OFF}")
    lab("P1_DONE")
    k2(True)
    e("s_waitcnt vmcnt(0)")
    e("s_barrier")
    cm("signal: thread i < n adds 1 to flag line first+i")
    dstamp(3)
    e(f"v_add_u32 v24, s{sT1}, v0")
    e(f"v_lshlrev_b32 v24, 7, v24")
    e(f"v_mov_b32 v25, 1")
    e(f"v_cmp_gt_u32 vcc, s{sT2}, v0")
    e("s_nop 4")
    e(f"s_mov_b64 exec, vcc")
    e("s_cbranch_execz P1_NOSIG")
    e(f"buffer_atomic_add v25, v24, {sr(sWS,4)}, s{sT3} offen sc1")
    lab("P1_NOSIG")
    e("s_mov_b64 exec, -1")
    stamp_store(0, 6, sWS, sW, 24)
    if OPT["prof"]: e("s_mov_b64 exec, -1")

def k2(pre=False):
    P = 4
    sX, sWS, sO, sD = 8, 20, 12, 16
    sW, sMT, sNT = 40, 41, 42
    sA, sB = 43, 44
    sT0, sT1, sT2, sT3 = 46, 47, 48, 49
    sA0, sB0 = 50, 51
    vL, vO1, vO2 = 1, 2, 3
    vXO = 4
    vLA = 7
    vT = 10
    vNA, vNB, vPO, vPV = 18, 19, 20, 21
    XR = 22
    ACC = 32
    STG = 112
    sFL, sNB = 52, 53
    if pre:
        cm("================ phase 2: out = x + [o|h] @ [wo; w_down]")
        srd(sO, 38, 2048 * 1280)
        e(f"v_lshlrev_b32 v{vO1}, 4, v{vL}")
        e(f"v_add_u32 v{vO2}, 4096, v{vO1}")
        e(f"s_and_b32 s{sT0}, s2, 7")
        e(f"s_lshr_b32 s{sT1}, s2, 3")
        e(f"s_and_b32 s{sMT}, s{sT0}, 3")
        e(f"s_lshl_b32 s{sMT}, s{sMT}, 3")
        e(f"s_and_b32 s{sT2}, s{sT1}, 7")
        e(f"s_add_u32 s{sMT}, s{sMT}, s{sT2}")
        e(f"s_lshr_b32 s{sNT}, s{sT0}, 2")
        e(f"s_lshl_b32 s{sNT}, s{sNT}, 2")
        e(f"s_lshr_b32 s{sT2}, s{sT1}, 3")
        e(f"s_add_u32 s{sNT}, s{sNT}, s{sT2}")
        e(f"s_mul_i32 s{sA0}, s{sMT}, {74*4096}")
        e(f"s_mul_i32 s{sB0}, s{sNT}, {74*5120}")
        e(f"s_add_u32 s{sB0}, s{sB0}, {W2_OFF}")
        if OPT["fake"] & 1: e(f"s_mov_b32 s{sA0}, 0")
        if OPT["fake"] & 2: e(f"s_mov_b32 s{sB0}, {W2_OFF}")
        e(f"s_lshl_b32 s{sFL}, s{sMT}, 3")
        e(f"s_add_u32 s{sFL}, s{sFL}, s{sNT}")
        e(f"s_lshl_b32 s{sFL}, s{sFL}, 7")
        e(f"s_add_u32 s{sFL}, s{sFL}, {FL_OFF}")
        e(f"v_mov_b32 v{vPO}, 0")
        e(f"s_mul_i32 s{sT0}, s{sMT}, {4*4370}")
        e(f"s_add_u32 s{sT1}, s{sT0}, {3*4370}")
        e(f"s_lshr_b32 s{sT0}, s{sT0}, 16")
        e(f"s_lshr_b32 s{sT1}, s{sT1}, 16")
        e(f"s_cmp_eq_u32 s{sT0}, s{sT1}")
        e(f"s_cselect_b32 s{sNB}, 11, 22")
        e(f"s_cmp_eq_u32 s{sW}, 7")
        e("s_cbranch_scc0 P2_NSMP")
        e(f"buffer_load_dword v{vPV}, v{vPO}, {sr(sWS,4)}, s{sFL} offen sc1")
        lab("P2_NSMP")
        for r in range(ACC, ACC + 80):
            e(f"v_mov_b32 v{r}, 0")
        return
    stamp(0)
    def pload(off):
        e(f"buffer_load_dword v{vPV}, v{vPO}, {sr(sWS,4)}, s{sFL} offen offset:{off} sc1")
    def poll(tag, need, first_wait, off, slp):
        e(f"s_mov_b32 s{sT1}, 0")
        e(f"s_waitcnt vmcnt({first_wait})")
        lab(f"P2_POLL{tag}")
        e(f"v_readfirstlane_b32 s{sT0}, v{vPV}")
        e(f"s_cmp_ge_u32 s{sT0}, {need}")
        e(f"s_cbranch_scc1 P2_OK{tag}")
        e(f"s_sleep {slp}")
        pload(off)
        e(f"s_add_u32 s{sT1}, s{sT1}, 1")
        e(f"s_cmp_lt_u32 s{sT1}, 0x8000")
        e("s_waitcnt vmcnt(0)")
        e(f"s_cbranch_scc1 P2_POLL{tag}")
        lab(f"P2_OK{tag}")
    def kb_of(st):
        if st < 6:
            e(f"s_add_u32 s{sT0}, s{sW}, {20+8*st}")
        elif st == 6:
            e(f"s_add_u32 s{sT0}, s{sW}, 68")
            e(f"s_cmp_lt_u32 s{sW}, 6")
            e(f"s_cselect_b32 s{sT1}, 0, 74")
            e(f"s_sub_u32 s{sT0}, s{sT0}, s{sT1}")
        else:
            e(f"s_add_u32 s{sT0}, s{sW}, {8*st-54}")
            if st == 9: e(f"s_min_u32 s{sT0}, s{sT0}, 19")
    def loadsA(st):
        R = STG + 36 * (st % P)
        kb_of(st)
        e(f"s_lshl_b32 s{sA}, s{sT0}, 12")
        e(f"s_add_u32 s{sA}, s{sA}, s{sA0}")
        for j in range(4):
            e(f"buffer_load_dwordx4 {vr(R+4*j,4)}, v{vO1}, {sr(sWS,4)}, s{sA} offen offset:{1024*j}{' sc1' if (st >= 6 or OPT['p2sc'] & 1) else ''}")
    def loadsB(st):
        R = STG + 36 * (st % P)
        kb_of(st)
        e(f"s_mul_i32 s{sB}, s{sT0}, 5120")
        e(f"s_add_u32 s{sB}, s{sB}, s{sB0}")
        for j in range(4):
            e(f"buffer_load_dwordx4 {vr(R+16+4*j,4)}, v{vO1}, {sr(sWS,4)}, s{sB} offen offset:{1024*j}{' sc1' if OPT['p2sc'] & 2 else ''}")
        e(f"buffer_load_dwordx4 {vr(R+32,4)}, v{vO2}, {sr(sWS,4)}, s{sB} offen{' sc1' if OPT['p2sc'] & 2 else ''}")
    def mm(st):
        R = STG + 36 * (st % P)
        if OPT["fair"] & 1 and st in (0, 2, 4): e(f"s_setprio {2 - st // 2}")
        if OPT["fair"] & 2 and st < 6: e("s_barrier")
        if OPT["fair"] & 4 and st in (1, 3, 5): e("s_barrier")
        for j in range(5):
            for mb in range(4):
                a = ACC + (mb * 5 + j) * 4
                e(f"v_mfma_f32_16x16x32_bf16 {vr(a,4)}, {vr(R+16+4*j,4)}, {vr(R+4*mb,4)}, {vr(a,4)}")
    e(f"s_cmp_eq_u32 s{sW}, 7")
    e("s_cbranch_scc0 P2_OKA")
    poll("A", 31, 0, 0, 2)
    e("s_barrier")
    stamp(1)
    if OPT["fair"] & 1: e("s_setprio 3")
    for st in range(4):
        loadsA(st); loadsB(st)
        if OPT["fair"] & 8: e("s_barrier")
    e(f"s_mov_b32 s{sT0}, 0xcccd")
    e(f"s_mul_i32 s{sT1}, s{sMT}, {64*1280}")
    e(f"s_mul_i32 s{sT2}, s{sNT}, 160")
    e(f"s_add_u32 s{sT1}, s{sT1}, s{sT2}")
    e(f"s_movk_i32 s{sT2}, 1280")
    for i in range(3):
        e(f"v_add_u32 v{vT}, {512*i}, v0")
        e(f"v_mul_lo_u32 v{vT+1}, v{vT}, s{sT0}")
        e(f"v_lshrrev_b32 v{vT+1}, 20, v{vT+1}")
        e(f"v_mul_u32_u24 v{vT+2}, 20, v{vT+1}")
        e(f"v_sub_u32 v{vT}, v{vT}, v{vT+2}")
        e(f"v_bfe_u32 v{vT+3}, v{vT+1}, 1, 2")
        e(f"v_xor_b32 v{vT+3}, v{vT+3}, v{vT}")
        e(f"v_mul_u32_u24 v{vT+2}, 320, v{vT+1}")
        e(f"v_lshl_add_u32 v{vLA+i}, v{vT+3}, 4, v{vT+2}")
        e(f"v_mul_lo_u32 v{vT+1}, v{vT+1}, s{sT2}")
        e(f"v_lshl_add_u32 v{vT+1}, v{vT}, 3, v{vT+1}")
        e(f"v_add_u32 v{vXO+i}, s{sT1}, v{vT+1}")
    e("s_waitcnt vmcnt(27)"); mm(0); loadsA(4); loadsB(4)
    e("s_waitcnt vmcnt(27)"); mm(1); loadsA(5); loadsB(5)
    e("s_waitcnt vmcnt(27)"); mm(2); loadsB(6)
    e("s_waitcnt vmcnt(23)"); mm(3); loadsB(7)
    pload(4)
    e("s_waitcnt vmcnt(20)"); mm(4); loadsB(8)
    e("s_waitcnt vmcnt(16)"); mm(5)
    e(f"s_cmp_lt_u32 s{sW}, 2")
    e("s_cbranch_scc0 K2_NB9")
    loadsB(9)
    lab("K2_NB9")
    poll("B", f"s{sNB}", 5, 4, 8)
    e(f"s_cmp_lt_u32 s{sW}, 2")
    e("s_cbranch_scc0 K2_NA9")
    loadsA(9)
    lab("K2_NA9")
    for st in range(6, 9): loadsA(st)
    for i in range(3):
        e(f"buffer_load_dwordx2 {vr(XR+2*i,2)}, v{vXO+i}, {sr(sX,4)}, 0 offen")
    e(f"s_cmp_lt_u32 s{sW}, 2")
    e("s_cbranch_scc0 K2_NM9")
    e("s_waitcnt vmcnt(15)"); mm(9)
    lab("K2_NM9")
    e("s_waitcnt vmcnt(11)"); mm(6)
    e("s_waitcnt vmcnt(7)"); mm(7)
    e("s_waitcnt vmcnt(3)"); mm(8)
    lab("K2_RED")
    stamp(2)
    e(f"v_and_b32 v{vT}, 15, v{vL}")
    e(f"v_bfe_u32 v{vT+2}, v{vL}, 1, 2")
    e(f"v_mul_u32_u24 v{vT}, 320, v{vT}")
    e(f"v_lshrrev_b32 v{vT+1}, 4, v{vL}")
    e(f"v_xor_b32 v{vT+1}, v{vT+1}, v{vT+2}")
    e(f"v_lshl_add_u32 v{vT}, v{vT+1}, 4, v{vT}")
    e(f"s_mul_i32 s{sT0}, s{sW}, 20480")
    e(f"v_add_u32 v{vT}, s{sT0}, v{vT}")
    e("s_nop 7")
    for mb in range(4):
        for j in range(5):
            a = ACC + (mb * 5 + j) * 4
            e(f"ds_write_b128 v{vT}, {vr(a,4)} offset:{16*mb*320 + 64*j}")
    e("s_waitcnt lgkmcnt(0)")
    e("s_barrier")
    RB = ACC
    for i in range(3):
        if i == 2:
            e(f"s_cmp_lt_u32 s{sW}, 4")
            e("s_cbranch_scc0 K2_FIN")
        e(f"v_add_u32 v{vT}, 61440, v{vLA+i}")
        e(f"v_add_u32 v{vT+1}, 122880, v{vLA+i}")
        for w_ in range(8):
            ad = (vLA + i, vT, vT + 1)[w_ // 3]
            e(f"ds_read_b128 {vr(RB+4*w_,4)}, v{ad} offset:{(w_ % 3) * 20480}")
        e("s_waitcnt vmcnt(0)" if i == 0 else "s_nop 0")
        b = RB + 32
        e(f"v_lshlrev_b32 v{b}, 16, v{XR+2*i}")
        e(f"v_and_b32 v{b+1}, 0xffff0000, v{XR+2*i}")
        e(f"v_lshlrev_b32 v{b+2}, 16, v{XR+2*i+1}")
        e(f"v_and_b32 v{b+3}, 0xffff0000, v{XR+2*i+1}")
        for w_ in range(0, 8, 2):
            e(f"s_waitcnt lgkmcnt({6-w_})")
            for c in range(4):
                e(f"v_add_f32 v{RB+4*w_+c}, v{RB+4*w_+c}, v{RB+4*w_+4+c}")
        for c in range(4):
            e(f"v_add_f32 v{RB+c}, v{RB+c}, v{RB+8+c}")
            e(f"v_add_f32 v{RB+16+c}, v{RB+16+c}, v{RB+24+c}")
        for c in range(4):
            e(f"v_add_f32 v{RB+c}, v{RB+c}, v{RB+16+c}")
        for c in range(4):
            e(f"v_add_f32 v{RB+c}, v{RB+c}, v{b+c}")
        e(f"v_cvt_pk_bf16_f32 v{b+4+2*i}, v{RB}, v{RB+1}")
        e(f"v_cvt_pk_bf16_f32 v{b+5+2*i}, v{RB+2}, v{RB+3}")
        e(f"buffer_store_dwordx2 {vr(b+4+2*i,2)}, v{vXO+i}, {sr(sO,4)}, 0 offen")
    lab("K2_FIN")
    if OPT["dbgt"]:
        e("s_waitcnt vmcnt(0)")
        dstamp(4)
        e("s_waitcnt lgkmcnt(0)")
        e(f"s_cmp_eq_u32 s{sW}, 0")
        e("s_cbranch_scc0 K1_END")
        e(f"s_mov_b32 s{sT0}, 32")
        e("s_cmp_eq_u32 s2, 0")
        e("s_cbranch_scc1 K2_DW")
        e(f"s_mov_b32 s{sT0}, 48")
        e("s_cmp_eq_u32 s2, 144")
        e("s_cbranch_scc0 K1_END")
        lab("K2_DW")
        srd(sD, 4, 256)
        for i in range(4):
            e(f"s_sub_u32 s{sT1}, s{82+2*i}, s80")
            e(f"v_mov_b32 v{8+i}, s{sT1}")
        e("v_mov_b32 v12, 0")
        e("s_mov_b64 exec, 1")
        e(f"buffer_store_dwordx4 v[8:11], v12, {sr(sD,4)}, s{sT0} offen")
    if OPT["prof"]: e("s_waitcnt vmcnt(0)")
    stamp_store(1, 4, sWS, sW, 8)
    lab("K1_END")
    e("s_endpgm")

hdr = open("cdna_kernels/%s.s.ref" % NAME).read().split("; Override launch")[0]
out = [hdr.rstrip()]
KN = NAME + "_kernel"
out.append(f"; @launch grid=(256,1,1) block=(512,1,1) lds={K1_LDS}")
out.append('.amdgcn_target "amdgcn-amd-amdhsa--gfx950"')
out.append(".text")
out.append(f".globl {KN}\n.type {KN},@function")
out.append(".p2align 8")
k1()
k2()
out += [l.replace("k1_kernel", KN) for l in L]
def kd(name, nv, acc):
    return f""".amdhsa_kernel {name}
  .amdhsa_next_free_vgpr {nv}
  .amdhsa_next_free_sgpr 102
  .amdhsa_accum_offset {acc}
  .amdhsa_group_segment_fixed_size 0
  .amdhsa_kernarg_size 80
  .amdhsa_user_sgpr_count 2
  .amdhsa_user_sgpr_kernarg_segment_ptr 1
  .amdhsa_system_sgpr_workgroup_id_x 1
.end_amdhsa_kernel"""
out.append('.section .rodata,"a"')
out.append(".p2align 6")
out.append(kd(KN, 256, 256))
open(sys.argv[1], "w").write("\n".join(out) + "\n")
```
